```python
import torch

def _softmax(x, axis=-1):
    return torch.softmax(x, dim=axis)

def _gelu(x):
    return torch.nn.functional.gelu(x, approximate='tanh')

def _silu(x):
    return torch.nn.functional.silu(x)

def _sigmoid(x):
    return torch.sigmoid(x)

def _layernorm(x, axis=-1, eps=1e-05):
    m = x.mean(dim=axis, keepdim=True)
    v = x.var(dim=axis, keepdim=True, unbiased=False)
    return (x - m) / torch.sqrt(v + eps)

def _scatter_add(tgt, idx, src, axis=0):
    return tgt.clone().index_add_(axis, idx, src)

def _segment_sum(src, seg, n):
    out = torch.zeros((n,) + src.shape[1:], dtype=src.dtype)
    return out.index_add_(0, seg, src)

def _pad(x, pw):
    flat = tuple((v for pair in reversed(pw) for v in pair))
    return torch.nn.functional.pad(x, flat)
kernel_name = 'adaLN_cond__softmax_full_mha__dense_activation_silu__prompt'

def setup_inputs():

    _w = lambda a: (lambda t: t.to(torch.bfloat16) if t.is_floating_point() else t)(torch.as_tensor(a))

    def _A_setup():
        B, S, D = (1, 2048, 576)
        return {'x': _w((lambda *s: torch.randn(*s, dtype=torch.bfloat16) * 0.05)(B, S, D)), 'wqkv': _w((lambda *s: torch.randn(*s, dtype=torch.bfloat16) * 0.05)(D, 3 * D)), 'wo': _w((lambda *s: torch.randn(*s, dtype=torch.bfloat16) * 0.05)(D, D))}
    _A_in = _A_setup()

    def _B_setup():
        B, S, D, F = (1, 2048, 576, 4608)
        return {'x': _w((lambda *s: torch.randn(*s, dtype=torch.bfloat16) * 0.05)(B, S, D)), 'w1': _w((lambda *s: torch.randn(*s, dtype=torch.bfloat16) * 3.2)(D, F) * D ** (-0.5)), 'w2': _w((lambda *s: torch.randn(*s, dtype=torch.bfloat16) * 0.4)(F, D) * F ** (-0.5))}
    _B_in = _B_setup()
    return {'A_x': _A_in['x'], 'A_wqkv': _A_in['wqkv'], 'A_wo': _A_in['wo'], 'B_x': _B_in['x'], 'B_w1': _B_in['w1'], 'B_w2': _B_in['w2'], 'c': _w((lambda *s: torch.randn(*s, dtype=torch.bfloat16) * 0.1)(1, 576) * 8.0), 'w_mod': _w((lambda *s: torch.randn(*s, dtype=torch.bfloat16) * 0.1)(576, 6 * 576) * 576 ** (-0.5) * 8.0)}

def reference(A_x, A_wqkv, A_wo, B_x, B_w1, B_w2, c, w_mod):

    def _A_ref(x, wqkv, wo):
        B, S, D = x.shape
        H = 32
        Dh = D // H
        qkv = (lambda x, *d: x.permute(*d))((x @ wqkv).reshape(B, S, 3, H, Dh), 2, 0, 3, 1, 4)
        q, k, v = (qkv[0], qkv[1], qkv[2])
        scale = Dh ** (-0.5)
        scores = torch.einsum('bhqd,bhkd->bhqk', q, k) * scale
        p = _softmax(scores, axis=-1)
        o = torch.einsum('bhqk,bhkd->bhqd', p, v)
        return (lambda x, *d: x.permute(*d))(o, 0, 2, 1, 3).reshape(B, S, D) @ wo

    def _B_ref(x, w1, w2):
        h = torch.einsum('bsd,df->bsf', x, w1)
        h = _silu(h)
        out = torch.einsum('bsf,fd->bsd', h, w2)
        return out
    x = A_x
    mod = (_silu(c) @ w_mod).reshape(c.shape[0], 6, 1, -1)
    sa, ca, ga, sb, cb, gb = (mod[:, 0].clone(), mod[:, 1].clone(), mod[:, 2].clone(), mod[:, 3].clone(), mod[:, 4].clone(), mod[:, 5].clone())
    h = _layernorm(x, axis=-1) * (1 + ca) + sa
    x = x + ga * _A_ref(h, A_wqkv, A_wo)
    h = _layernorm(x, axis=-1) * (1 + cb) + sb
    x = x + gb * _B_ref(h, B_w1, B_w2)
    return x
```

```python
import sys
from lib import *
from k01 import *
def build(ks):
    hdr = open("adaLN_cond__softmax_full_mha__dense_activation_silu__prompt.s.ref").read().split("; Override launch")[0]
    o = hdr + "\n".join(k.launch() for k in ks) + "\n"
    o += '.amdgcn_target "amdgcn-amd-amdhsa--gfx950"\n.text\n'
    seen = []
    for k in ks:
        if k.name in seen: continue
        seen.append(k.name); o += k.text()
    o += "CODE_END:\n    s_endpgm\n"
    o += '.section .rodata,"a"\n'
    seen = []
    for k in ks:
        if k.name in seen: continue
        seen.append(k.name); o += k.desc()
    return o
if __name__ == "__main__":
    ks = [K0(), K1()]
    try:
        from k26 import *
        ks += later()
    except ImportError: pass
    txt = build(ks)
    if os.environ.get("RT"): txt = txt.replace("s_memtime", "s_memrealtime")
    open(sys.argv[1], "w").write(txt)
    for k in ks: print(k.name, "ins", sum(isinstance(x, Ins) for x in k.L), "nops", k.nops, file=sys.stderr)
```

```python
from lib import *
MODP=0x0; MODF=0x10000; MODB=0x14000; ST1=0x20000; WQF=0x100000; QIMG=0x400000; KVIMG=0x900000
OF=0xE00000; X1F=0x1100000; YF=0x1400000; ST2=0x1700000; UVF=0x1780000; HF=0x1800000; PART=0x2A00000
HIMG=155648; TIMG=2432
LOG2E=1.4426950408889634
import struct
def f2u(x): return struct.unpack("<I", struct.pack("<f", x))[0]
for n in range(576): assert (n*1821)>>16 == n//36

def head(k, ngrid):
    k(f"""s_load_dwordx16 s[8:23], s[0:1], 0
    s_load_dwordx2 s[24:25], s[0:1], 64
    s_load_dwordx2 s[28:29], s[0:1], 80
    s_cmp_ge_u32 s2, {ngrid}
    s_cbranch_scc1 END_{k.name}
    v_lshrrev_b32 v2, 6, v0
    v_and_b32 v1, 63, v0
    v_readfirstlane_b32 s6, v2""")
def tail(k):
    k(f"END_{k.name}:\ns_endpgm")
def code_prefetch(k, lab0, lab1, vt, slice_sreg=None):
    k(f"""s_getpc_b64 s[40:41]
    PC_{k.name}:
    s_add_u32 s40, s40, {lab0}-PC_{k.name}
    s_addc_u32 s41, s41, 0
    s_lshr_b32 s42, s2, 3
    s_lshl_b32 s42, s42, 12
    v_lshlrev_b32 {v(vt)}, 6, v1
    v_add_u32 {v(vt)}, s42, {v(vt)}
    v_mov_b32 {v(vt+1)}, {lab1}-{lab0}
    v_cmp_lt_u32 vcc, {v(vt)}, {v(vt+1)}
    v_mov_b32 {v(vt+3)}, s41
    v_add_co_u32 {v(vt+2)}, s[44:45], s40, {v(vt)}
    v_addc_co_u32 {v(vt+3)}, s[44:45], 0, {v(vt+3)}, s[44:45]
    s_and_saveexec_b64 s[42:43], vcc
    s_cbranch_execz PFX_{k.name}
    global_load_dword {v(vt)}, {v(vt+2,2)}, off
    PFX_{k.name}:
    s_mov_b64 exec, s[42:43]""")

def tr_lane(k, vG, vr, vc):
    k(f"""v_lshrrev_b32 {v(vG)}, 4, v1
    v_bfe_u32 {v(vr)}, v1, 2, 2
    v_and_b32 {v(vc)}, 3, v1""")

def K0():
    k = K("k0_kernel", 256, 384, 2*9216+2*512+9216, 64)
    head(k, 256)
    k("""s_cmp_ge_u32 s6, 5
    s_cbranch_scc1 K0_F
    s_cmp_eq_u32 s6, 4
    s_cbranch_scc1 K0_P
    s_cmp_ge_u32 s6, 2
    s_cbranch_scc1 K0_L
    s_cmp_ge_u32 s2, 216
    s_cbranch_scc1 END_k0_kernel""")
    k(f"""s_mul_i32 s3, s2, 1214
    s_lshr_b32 s3, s3, 16
    s_mul_i32 s4, s3, 54
    s_sub_u32 s4, s2, s4             ; cb
    s_lshl_b32 s4, s4, 6
    s_lshl_b32 s5, s6, 5
    s_add_u32 s4, s4, s5             ; col0
    s_mul_i32 s5, s3, {144*6912}
    s_lshl_b32 s7, s4, 1
    s_add_u32 s5, s5, s7             ; soffset
    s_mul_i32 s7, s6, 9216
    v_lshrrev_b32 v2, 2, v1
    v_mul_u32_u24 v2, 6912, v2
    v_and_b32 v3, 3, v1
    v_lshl_add_u32 v2, v3, 4, v2
    v_lshlrev_b32 v3, 1, v1
    s_mul_i32 s30, s3, 288
    s_waitcnt lgkmcnt(0)""")
    for n in range(216): assert (n*1214)>>16 == n//54
    k.srd(32, 22, 576*6912); k.srd(36, 20, 1152); k.srd(44, 28, 4*3456*4, MODP)
    for j in range(3): k(f"buffer_load_ushort v{8+j}, v3, s[36:39], s30 offen offset:{128*j}")
    for s in range(9):
        k(f"""s_add_u32 m0, s7, {s*1024}
        s_add_u32 s31, s5, {s*16*6912}
        buffer_load_dwordx4 v2, s[32:35], s31 offen lds""")
    tr_lane(k, 4, 5, 6)
    k(f"""v_lshrrev_b32 v7, 1, v4
    v_lshl_add_u32 v5, v7, 3, v5
    v_lshlrev_b32 v5, 6, v5
    v_and_b32 v4, 1, v4
    v_lshl_add_u32 v5, v4, 5, v5
    v_lshl_add_u32 v5, v6, 3, v5
    v_add_u32 v5, s7, v5
    s_lshl_b32 s30, s6, 9
    s_add_u32 s30, s30, {2*9216}
    v_add_u32 v3, s30, v3
    v_lshlrev_b32 v7, 4, v7
    v_add_u32 v7, s30, v7
    s_mov_b32 s31, {f2u(-LOG2E)}
    s_waitcnt vmcnt(9)""")
    for j in range(3): k(f"v_lshlrev_b32 v{8+j}, 16, v{8+j}\nv_mul_f32 v{12+j}, s31, v{8+j}")
    for j in range(3): k(f"v_exp_f32 v{12+j}, v{12+j}")
    for j in range(3): k(f"v_add_f32 v{12+j}, 1.0, v{12+j}")
    for j in range(3): k(f"v_rcp_f32 v{12+j}, v{12+j}")
    for j in range(3): k(f"v_mul_f32 v{12+j}, v{8+j}, v{12+j}")
    for j in range(3): k(f"v_cvt_pk_bf16_f32 v{12+j}, v{12+j}, v{12+j}")
    for j in range(3): k(f"ds_write_b16 v3, v{12+j} offset:{128*j}")
    for s in range(9):
        b = 16 + 8*(s % 2)
        k(f"""s_waitcnt vmcnt({8-s})
        ds_read_b128 {v(b,4)}, v7 offset:{32*s}
        ds_read_b64_tr_b16 {v(b+4,2)}, v5 offset:{1024*s}
        ds_read_b64_tr_b16 {v(b+6,2)}, v5 offset:{1024*s+256}
        s_waitcnt lgkmcnt(0)
        v_mfma_f32_32x32x16_bf16 v[32:47], {v(b,4)}, {v(b+4,4)}, {'0' if s==0 else 'v[32:47]'}""")
    k(f"""s_mul_i32 s3, s3, {3456*4}
    s_lshl_b32 s4, s4, 2
    s_add_u32 s3, s3, s4
    v_lshlrev_b32 v2, 2, v1
    s_mov_b32 exec_hi, 0
    buffer_store_dword v32, v2, s[44:47], s3 offen
    s_endpgm""")
    k(f"""K0_L:
    s_and_b32 s3, s2, 7
    s_lshl_b32 s3, s3, 5
    s_lshr_b32 s4, s2, 3
    s_add_u32 s3, s3, s4             ; blk8
    s_lshl_b32 s3, s3, 1
    s_add_u32 s3, s3, s6
    s_sub_u32 s3, s3, 2              ; blk4
    s_mul_i32 s4, s3, {4*1152}
    v_lshrrev_b32 v2, 4, v1
    v_and_b32 v3, 15, v1
    v_mul_u32_u24 v4, 1152, v2
    v_lshl_add_u32 v4, v3, 3, v4
    s_waitcnt lgkmcnt(0)""")
    k.srd(32, 8, 2048*1152); k.srd(36, 28, 2048*8, ST1)
    for i in range(9): k(f"buffer_load_dwordx2 {v(8+2*i,2)}, v4, s[32:35], s4 offen offset:{128*i}")
    k("s_mov_b32 s30, 0xffff0000")
    for i in range(18):
        if i % 2 == 0: k(f"s_waitcnt vmcnt({8-i//2})")
        k(f"v_lshlrev_b32 v{28+2*i}, 16, v{8+i}\nv_and_b32 v{29+2*i}, s30, v{8+i}")
        if i == 1: k(f"v_pk_add_f32 v[6:7], v[28:29], v[30:31]")
        elif i > 1: k(f"v_pk_add_f32 v[6:7], v[6:7], {v(28+2*i,2)}")
    def red16(r):
        for sh in (8, 4, 2, 1): k(f"v_add_f32_dpp v{r}, v{r}, v{r} row_ror:{sh} row_mask:0xf bank_mask:0xf")
    k("v_add_f32 v6, v6, v7"); red16(6)
    k(f"v_mul_f32 v6, {f2u(-1/576.)}, v6")
    for i in range(18):
        k(f"v_pk_add_f32 {v(28+2*i,2)}, {v(28+2*i,2)}, v[6:7] op_sel_hi:[1,0]")
    for i in range(18):
        if i == 0: k("v_pk_mul_f32 v[8:9], v[28:29], v[28:29]")
        else: k(f"v_pk_fma_f32 v[8:9], {v(28+2*i,2)}, {v(28+2*i,2)}, v[8:9]")
    k("v_add_f32 v8, v8, v9"); red16(8)
    k(f"""v_mov_b32 v9, {f2u(1e-5)}
    v_fmac_f32 v9, {f2u(1/576.)}, v8
    v_rsq_f32 v8, v9
    v_lshlrev_b32 v2, 3, v2
    v_mul_f32 v9, v6, v8
    s_lshl_b32 s3, s3, 5
    v_cmp_eq_u32 vcc, 0, v3
    s_and_saveexec_b64 s[30:31], vcc
    buffer_store_dwordx2 v[8:9], v2, s[36:39], s3 offen
    s_endpgm""")
    LB = 2*9216+1024
    k(f"""K0_P:
    s_cmp_ge_u32 s2, 216
    s_cbranch_scc1 END_k0_kernel
    s_mul_i32 s3, s2, 1821
    s_lshr_b32 s3, s3, 16            ; cgp
    s_mul_i32 s4, s3, 36
    s_sub_u32 s4, s2, s4             ; kstep
    s_mul_i32 s5, s4, {16*3456}
    s_mul_i32 s7, s3, 576
    s_add_u32 s5, s5, s7
    s_waitcnt lgkmcnt(0)""")
    k.srd(32, 10, 576*3456); k.srd(36, 28, 54*36*1024, WQF)
    for j in range(9):
        k(f"""v_add_u32 v2, {64*j}, v1
        v_mul_u32_u24 v3, 1821, v2
        v_lshrrev_b32 v3, 16, v3
        v_lshlrev_b32 v2, 4, v2
        v_mul_u32_u24 v3, {3456-576}, v3
        v_add_u32 v2, v2, v3
        s_mov_b32 m0, {LB+1024*j}
        buffer_load_dwordx4 v2, s[32:35], s5 offen lds""")
    tr_lane(k, 4, 5, 6)
    k(f"""v_lshrrev_b32 v7, 1, v4
    v_lshl_add_u32 v5, v7, 3, v5
    v_mul_u32_u24 v5, 576, v5
    v_add_u32 v5, {LB}, v5
    v_and_b32 v4, 1, v4
    v_lshl_add_u32 v7, v4, 2, v6
    v_mul_u32_u24 v7, 72, v7
    v_add_u32 v7, v7, v5
    v_mul_u32_u24 v4, 40, v4
    v_add_u32 v5, v5, v4
    v_and_b32 v4, 1, v6
    v_lshrrev_b32 v6, 1, v6
    v_lshl_add_u32 v6, v4, 1, v6     ; pi(c)
    v_lshl_add_u32 v5, v6, 3, v5
    v_lshlrev_b32 v2, 4, v1
    s_lshr_b32 s5, s3, 1
    s_mul_i32 s5, s5, 18
    s_and_b32 s3, s3, 1
    s_add_u32 s7, s5, s3
    s_add_u32 s7, s7, 16
    s_lshl_b32 s3, s3, 3
    s_add_u32 s5, s5, s3
    s_mul_i32 s5, s5, 36
    s_add_u32 s5, s5, s4
    s_lshl_b32 s5, s5, 10
    s_mul_i32 s7, s7, 36
    s_add_u32 s7, s7, s4
    s_lshl_b32 s7, s7, 10
    s_waitcnt vmcnt(0)""")
    for p in range(8):
        k(f"ds_read_b64_tr_b16 {v(8+4*p,2)}, v5 offset:{72*p}\nds_read_b64_tr_b16 {v(10+4*p,2)}, v5 offset:{72*p+2304}")
        if p == 5: k("s_waitcnt lgkmcnt(4)")
    k(f"ds_read_b64_tr_b16 v[40:41], v7 offset:32\nds_read_b64_tr_b16 v[42:43], v7 offset:{32+2304}\ns_waitcnt lgkmcnt(0)")
    for p in range(8):
        k(f"buffer_store_dwordx4 {v(8+4*p,4)}, v2, s[36:39], s5 offen\ns_add_u32 s5, s5, {36*1024}")
    k("buffer_store_dwordx4 v[40:43], v2, s[36:39], s7 offen\ns_endpgm")
    k("K0_F:")
    code_prefetch(k, "k1_kernel", "CODE_END", 4)
    tail(k)
    return k

def bf16_round(k, regs, tmp):
    for i in range(0, len(regs), 2):
        k(f"v_cvt_pk_bf16_f32 v{tmp+i//2}, v{regs[i]}, v{regs[i+1]}")
    for i in range(0, len(regs), 2):
        k(f"v_lshlrev_b32 v{regs[i]}, 16, v{tmp+i//2}\nv_and_b32 v{regs[i+1]}, 0xffff0000, v{tmp+i//2}")

def K1():
    PB = 72*1040
    k = K("k1_kernel", 256, 512, PB+8192, 256)
    head(k, 256)
    X=28; W=64; ACC=208; PA=[8, 240]
    k(f"""s_and_b32 s3, s2, 1
    s_lshl_b32 s3, s3, 2
    s_bfe_u32 s4, s2, 0x20003
    s_add_u32 s3, s3, s4             ; fb
    s_bfe_u32 s4, s2, 0x20001
    s_lshl_b32 s4, s4, 3
    s_lshr_b32 s5, s2, 5
    s_add_u32 s4, s4, s5             ; tb
    s_mul_i32 s3, s3, 7
    s_add_u32 s3, s3, s6
    s_cmp_eq_u32 s6, 7
    s_cselect_b32 s3, 60, s3
    s_lshl_b32 s5, s4, 3
    s_add_u32 s5, s5, s6
    s_lshl_b32 s7, s5, 6
    s_mul_i32 s5, s5, {8*1152}
    s_mul_i32 s30, s3, {36*1024}
    v_lshlrev_b32 v2, 4, v0          ; tid*16
    v_lshrrev_b32 v3, 3, v1          ; t
    v_and_b32 v4, 7, v1              ; cg
    v_mul_u32_u24 v5, 1152, v3
    v_lshl_add_u32 v5, v4, 4, v5
    v_lshlrev_b32 v6, 3, v3
    v_lshlrev_b32 v7, 4, v1
    s_waitcnt lgkmcnt(0)""")
    k.srd(32, 28, 4*3456*4, MODP); k.srd(36, 28, 2048*8, ST1); k.srd(44, 8, 2048*1152); k.srd(48, 28, 54*36*1024, WQF)
    k.srd(52, 28, KVIMG-QIMG+32*HIMG, QIMG)
    for j in range(4):
        k(f"s_mov_b32 s31, {j*3456*4}\nbuffer_load_dwordx4 {v(8+4*j,4)}, v2, s[32:35], s31 offen")
    k("buffer_load_dwordx2 v[24:25], v6, s[36:39], s7 offen")
    for i in range(9): k(f"buffer_load_dwordx4 {v(X+4*i,4)}, v5, s[44:47], s5 offen offset:{128*i}")
    for s in range(36):
        k(f"buffer_load_dwordx4 {v(W+4*s,4)}, v7, s[48:51], s30 offen offset:{1024*(s%4)}")
        if s % 4 == 3: k("s_add_u32 s30, s30, 4096")
    k(f"""v_add_u32 v2, {PB}, v2
    v_cmp_le_u32 vcc, 144, v0
    v_cndmask_b32 v26, 0, 1.0, vcc
    v_mul_u32_u24 v5, 1040, v4
    s_lshl_b32 s31, s6, 7
    v_lshl_add_u32 v5, v3, 4, v5
    v_add_u32 v5, s31, v5
    v_lshlrev_b32 v6, 5, v4
    v_add_u32 v6, {PB}, v6
    s_waitcnt vmcnt(46)
    v_pk_add_f32 v[8:9], v[8:9], v[12:13]
    v_pk_add_f32 v[10:11], v[10:11], v[14:15]
    v_pk_add_f32 v[16:17], v[16:17], v[20:21]
    v_pk_add_f32 v[18:19], v[18:19], v[22:23]
    v_pk_add_f32 v[8:9], v[8:9], v[16:17]
    v_pk_add_f32 v[10:11], v[10:11], v[18:19]""")
    bf16_round(k, [8,9,10,11], 12)
    for r in range(8, 12): k(f"v_add_f32 v{r}, v26, v{r}")
    bf16_round(k, [8,9,10,11], 12)
    k("ds_write_b128 v2, v[8:11]\ns_waitcnt lgkmcnt(0)\ns_barrier\ns_mov_b32 s31, 0xffff0000")
    def prm(i):
        b = PA[i % 2]
        k(f"""ds_read_b128 {v(b,4)}, v6 offset:{256*i}
        ds_read_b128 {v(b+4,4)}, v6 offset:{256*i+16}
        ds_read_b128 {v(b+8,4)}, v6 offset:{256*i+2304}
        ds_read_b128 {v(b+12,4)}, v6 offset:{256*i+2320}""")
    prm(0)
    T = ACC
    for i in range(9):
        if i < 8: prm(i+1)
        k(f"s_waitcnt vmcnt({44-i})")
        b = PA[i % 2]
        for j in range(4):
            k(f"v_lshlrev_b32 v{T+2*j}, 16, v{X+4*i+j}\nv_and_b32 v{T+2*j+1}, s31, v{X+4*i+j}")
        for j in range(4):
            k(f"v_pk_fma_f32 {v(T+2*j,2)}, {v(T+2*j,2)}, v[24:25], v[24:25] op_sel:[0,0,1] op_sel_hi:[1,0,1]")
        k(f"s_waitcnt lgkmcnt({4 if i < 8 else 0})")
        for j in range(4):
            k(f"v_pk_fma_f32 {v(T+2*j,2)}, {v(T+2*j,2)}, {v(b+8+2*j,2)}, {v(b+2*j,2)}")
        for j in range(4):
            k(f"v_cvt_pk_bf16_f32 v{X+4*i+j}, v{T+2*j}, v{T+2*j+1}")
        if i == 7: k(f"v_add_u32 v5, {7*8320}, v5")
        k(f"ds_write_b128 v5, {v(X+4*i,4)} offset:{8320*(i if i < 7 else i-7)}")
    k(f"""v_lshrrev_b32 v3, 5, v1          ; hf
    v_and_b32 v4, 31, v1             ; tok
    v_mul_u32_u24 v5, 1040, v3
    v_lshl_add_u32 v5, v4, 4, v5
    v_add_u32 v6, {18*2080}, v5
    s_waitcnt lgkmcnt(0)
    s_barrier
    s_cmp_ge_u32 s3, 54
    s_cbranch_scc1 K1_IDLE""")
    def hrd(s):
        b = X + 8*(s % 4)
        ar = "v5" if s < 18 else "v6"
        for tt in range(2): k(f"ds_read_b128 {v(b+4*tt,4)}, {ar} offset:{2080*(s%18)+512*tt}")
    for s in range(3): hrd(s)
    for s in range(36):
        if s+3 < 36: hrd(s+3)
        k(f"s_waitcnt vmcnt({35-s}) lgkmcnt({2*min(3,35-s)})")
        b = X + 8*(s % 4)
        for tt in range(2):
            A = v(ACC+16*tt,16)
            k(f"v_mfma_f32_32x32x16_bf16 {A}, {v(W+4*s,4)}, {v(b+4*tt,4)}, {'0' if s==0 else A}")
    k(f"""s_cmp_lt_u32 s3, 18
    s_cselect_b32 s31, {f2u(18**-0.5*LOG2E)}, 1.0
    s_cselect_b32 s30, 0, {KVIMG-QIMG}
    s_mul_i32 s5, s4, {2*TIMG}
    s_add_u32 s30, s30, s5
    s_mul_i32 s5, s3, {1821*2}
    s_lshr_b32 s5, s5, 16            ; section
    s_mul_i32 s7, s5, 18
    s_sub_u32 s7, s3, s7             ; idx
    v_lshrrev_b32 v8, 4, v4
    v_and_b32 v9, 15, v4
    v_mul_u32_u24 v8, 640, v8
    v_add_u32 v8, 1024, v8
    s_cmp_ge_u32 s7, 16
    s_cbranch_scc1 K1_HI
    s_mul_i32 s7, s7, {2*HIMG}
    s_add_u32 s30, s30, s7
    s_cmp_eq_u32 s5, 2
    s_cselect_b64 vcc, -1, 0
    v_lshl_add_u32 v8, v9, 5, v8
    v_lshl_add_u32 v8, v3, 4, v8
    v_lshlrev_b32 v9, 4, v1
    v_cndmask_b32 v8, v9, v8, vcc
    s_add_u32 s7, s30, {HIMG}""")
    for n in range(54): assert (n*3642)>>16 == n//18
    for r in range(32): k(f"v_mul_f32 v{ACC+r}, s31, v{ACC+r}")
    for q in range(4):
        for j in range(4): k(f"v_cvt_pk_bf16_f32 v{X+4*q+j}, v{ACC+8*q+2*j}, v{ACC+8*q+2*j+1}")
        k(f"buffer_store_dwordx4 {v(X+4*q,4)}, v8, s[52:55], {'s30' if q%2==0 else 's7'} offen offset:{TIMG*(q//2)}")
    k("s_endpgm")
    k(f"""K1_HI:
    s_sub_u32 s7, s7, 16
    s_mul_i32 s7, s7, {16*HIMG}
    s_add_u32 s30, s30, s7
    s_mov_b32 s7, {2*HIMG}
    v_mul_lo_u32 v10, v3, s7
    v_lshl_add_u32 v8, v9, 3, v8
    v_add_u32 v8, v8, v10
    v_lshl_add_u32 v9, v4, 2, v10""")
    for r in range(32): k(f"v_mul_f32 v{ACC+r}, s31, v{ACC+r}")
    for q in range(16):
        k(f"v_cvt_pk_bf16_f32 v{X+2*q}, v{ACC+2*q}, v{ACC+2*q+1}\nv_mov_b32 v{X+2*q+1}, 0x3f803f80")
    k("s_cmp_eq_u32 s5, 2\ns_cbranch_scc1 K1_HIV")
    def histores(isv):
        for j in range(4):
            for par in range(2):
                k(f"s_add_u32 s7, s30, {(4*j+par)*HIMG + (0 if isv else 2304)}")
                for tt in range(2):
                    r = X + 2*(8*tt+2*j+par)
                    if isv: k(f"buffer_store_dwordx2 {v(r,2)}, v8, s[52:55], s7 offen offset:{512+TIMG*tt}")
                    else: k(f"buffer_store_dword v{r}, v9, s[52:55], s7 offen offset:{TIMG*tt}")
        k("s_endpgm")
    histores(False)
    k("K1_HIV:"); histores(True)
    k(f"""K1_IDLE:
    s_cmp_lt_u32 s6, 7
    s_cbranch_scc1 END_k1_kernel
    s_cmp_ge_u32 s2, 9
    s_cbranch_scc1 END_k1_kernel
    s_lshl_b32 s3, s2, 6
    v_add_u32 v2, s3, v1
    v_add_u32 v2, 288, v2
    v_lshlrev_b32 v3, 4, v2""")
    k.srd(36, 28, 3456*4, MODF); k.srd(44, 28, 3456*2, MODB)
    for j in range(4):
        k(f"s_mov_b32 s31, {j*3456*4}\nbuffer_load_dwordx4 {v(8+4*j,4)}, v3, s[32:35], s31 offen")
    k(f"""v_subrev_u32 v4, 576, v2
    v_cmp_gt_u32 vcc, 144, v4
    v_cndmask_b32 v26, 0, 1.0, vcc
    v_lshlrev_b32 v4, 3, v2
    s_waitcnt vmcnt(0)
    v_pk_add_f32 v[8:9], v[8:9], v[12:13]
    v_pk_add_f32 v[10:11], v[10:11], v[14:15]
    v_pk_add_f32 v[16:17], v[16:17], v[20:21]
    v_pk_add_f32 v[18:19], v[18:19], v[22:23]
    v_pk_add_f32 v[8:9], v[8:9], v[16:17]
    v_pk_add_f32 v[10:11], v[10:11], v[18:19]""")
    bf16_round(k, [8,9,10,11], 12)
    for r in range(8, 12): k(f"v_add_f32 v{r}, v26, v{r}")
    bf16_round(k, [8,9,10,11], 12)
    k("buffer_store_dwordx4 v[8:11], v3, s[36:39], 0 offen\nbuffer_store_dwordx2 v[12:13], v4, s[44:47], 0 offen")
    tail(k)
    return k
```

```python
from lib import *
from k01 import *

class VM:
    def __init__(s, k): s.k = k; s.n = 0; s.tag = {}
    def issue(s, text, tag=None):
        s.k(text); s.n += 1
        if tag is not None: s.tag[tag] = s.n
    def cnt(s, tag): return min(63, s.n - s.tag[tag])
    def wait(s, tag, extra=""): s.k(f"s_waitcnt vmcnt({s.cnt(tag)}){extra}")

def pi_c(k, vc, vt):
    k(f"v_and_b32 {v(vt)}, 1, {v(vc)}\nv_lshrrev_b32 {v(vc)}, 1, {v(vc)}\nv_lshl_add_u32 {v(vc)}, {v(vt)}, 1, {v(vc)}")

def K2():
    k = K("k2_kernel", 256, 512, 163840, 96)
    head(k, 256)
    S=[16,32]; O=48; P=64; QL=72; QH=76; KL=80; KH=78; V0=84; V1=88
    AKL=8; AKH=9; AV=[10,11]
    k(f"""s_and_b32 s3, s2, 7
    s_lshl_b32 s3, s3, 2
    s_bfe_u32 s4, s2, 0x20003
    s_add_u32 s3, s3, s4             ; head
    s_lshr_b32 s4, s2, 5
    s_lshl_b32 s4, s4, 3
    s_add_u32 s4, s4, s6             ; q tile
    s_mul_i32 s5, s3, {HIMG}
    s_mul_i32 s7, s4, {TIMG}
    s_add_u32 s7, s7, s5
    s_lshl_b32 s30, s6, 10
    s_add_u32 s5, s5, s30
    v_lshlrev_b32 v2, 4, v1
    v_and_b32 v3, 31, v1
    v_lshlrev_b32 v3, 2, v3
    s_waitcnt lgkmcnt(0)""")
    k.srd(32, 28, 32*HIMG, QIMG); k.srd(36, 28, 32*HIMG, KVIMG); k.srd(44, 28, 64*36*1024, OF)
    k(f"buffer_load_dwordx4 {v(QL,4)}, v2, s[32:35], s7 offen\nbuffer_load_dword v{QH}, v3, s[32:35], s7 offen offset:2304")
    for j in range(19):
        k(f"s_add_u32 m0, s30, {8192*j}\ns_add_u32 s31, s5, {8192*j}\nbuffer_load_dwordx4 v2, s[36:39], s31 offen lds")
    tr_lane(k, 4, 5, 6); pi_c(k, 6, 7)
    k(f"""v_lshrrev_b32 v7, 1, v4
    v_lshl_add_u32 v5, v7, 2, v5     ; 4hf+r
    v_lshlrev_b32 v12, 5, v5
    v_lshl_add_u32 v12, v6, 3, v12   ; lo
    v_lshlrev_b32 v13, 3, v5
    v_add_u32 v13, 512, v13          ; hi
    v_and_b32 v4, 1, v4
    v_cmp_eq_u32 vcc, 1, v4
    v_add_u32 v14, 256, v12
    v_add_u32 v15, 64, v13
    v_cndmask_b32 v12, v12, v13, vcc
    v_cndmask_b32 v13, v14, v15, vcc
    v_cmp_gt_u32 s[48:49], 32, v1
    v_mov_b32 v{KH+1}, 0x3f803f80
    s_mov_b32 s40, 0
    s_mov_b32 s41, 1
    s_waitcnt vmcnt(18)
    v_cndmask_b32 v{QH}, 0, v{QH}, s[48:49]
    s_barrier
    K2_RESTART:
    v_mov_b32 v{QH+1}, 0
    v_mov_b32 v14, 0xff800000
    v_mov_b32 v{AKL}, v2
    v_mov_b32 v{AKH}, v3
    K2_MAX:
    ds_read_b32 v{KH}, v{AKH} offset:2304
    ds_read_b128 {v(KL,4)}, v{AKL}
    v_add_u32 v{AKH}, {TIMG}, v{AKH}
    v_add_u32 v{AKL}, {TIMG}, v{AKL}
    s_waitcnt lgkmcnt(0)
    v_mfma_f32_32x32x8_bf16 {v(S[0],16)}, {v(KH,2)}, {v(QH,2)}, 0
    v_mfma_f32_32x32x16_bf16 {v(S[0],16)}, {v(KL,4)}, {v(QL,4)}, {v(S[0],16)}
    s_sub_u32 s41, s41, 1""")
    for j in range(8): k(f"v_max3_f32 v14, v{S[0]+2*j}, v{S[0]+2*j+1}, v14")
    k(f"""s_cmp_lg_u32 s41, 0
    s_cbranch_scc1 K2_MAX""")
    k.check_loop("K2_MAX")
    k(f"""v_mov_b32 v15, v14
    v_mov_b32 v{AKL}, v2
    v_mov_b32 v{AKH}, v3
    v_permlane32_swap_b32 v14, v15
    ds_read_b32 v{KH}, v{AKH} offset:2304
    ds_read_b128 {v(KL,4)}, v{AKL}
    v_max_f32 v14, v14, v15
    v_cvt_pk_bf16_f32 v15, -v14, -v14
    v_mov_b32 v{AV[0]}, v12
    v_lshlrev_b32 v4, 16, v15
    v_add_f32 v4, v4, v14
    v_cvt_pk_bf16_f32 v4, -v14, -v4
    v_mov_b32 v{AV[1]}, v13
    v_cndmask_b32 v{QH+1}, 0, v4, s[48:49]""")
    for r in range(16): k(f"v_mov_b32 v{O+r}, 0")
    for r in range(4): k(f"v_mov_b32 v{P+4+r}, 0\nv_mov_b32 v{V1+r}, 0")
    k(f"""s_waitcnt lgkmcnt(0)
    v_mfma_f32_32x32x8_bf16 {v(S[0],16)}, {v(KH,2)}, {v(QH,2)}, 0
    v_mfma_f32_32x32x16_bf16 {v(S[0],16)}, {v(KL,4)}, {v(QL,4)}, {v(S[0],16)}
    ds_read_b32 v{KH}, v{AKH} offset:{2304+TIMG}
    ds_read_b128 {v(KL,4)}, v{AKL} offset:{TIMG}
    ds_read_b64_tr_b16 {v(V0,2)}, v{AV[0]} offset:1024
    ds_read_b64_tr_b16 {v(V0+2,2)}, v{AV[1]} offset:1024
    s_mov_b32 s42, 8
    s_nop 7
    s_waitcnt lgkmcnt(0)
    K2_LOOP:
    s_cmp_le_u32 s40, 2
    s_cbranch_scc1 K2_SYNC
    K2_BACK:""")
    for t in range(8):
        c = S[t % 2]; n = S[(t+1) % 2]
        e = lambda i: k(f"v_exp_f32 v{c+i}, v{c+i}")
        cv = lambda i: k(f"v_cvt_pk_bf16_f32 v{P+i}, v{c+2*i}, v{c+2*i+1}")
        k(f"""s_waitcnt lgkmcnt(5)
        v_mfma_f32_32x32x8_bf16 {v(n,16)}, {v(KH,2)}, {v(QH,2)}, 0
        ds_read_b32 v{KH}, v{AKH} offset:{2304+TIMG*(t+2)}""")
        e(0); e(1); e(2); e(3)
        k(f"""s_waitcnt lgkmcnt(4)
        v_mfma_f32_32x32x16_bf16 {v(O,16)}, {v(V1,4)}, {v(P+4,4)}, {v(O,16)}
        ds_read_b64_tr_b16 {v(V1,2)}, v{AV[0]} offset:{1024+640+TIMG*t}
        ds_read_b64_tr_b16 {v(V1+2,2)}, v{AV[1]} offset:{1024+640+TIMG*t}""")
        cv(0); e(4); cv(1); e(5); e(6); e(7)
        k(f"""s_waitcnt lgkmcnt(5)
        v_mfma_f32_32x32x16_bf16 {v(n,16)}, {v(KL,4)}, {v(QL,4)}, {v(n,16)}
        ds_read_b128 {v(KL,4)}, v{AKL} offset:{TIMG*(t+2)}""")
        cv(2); e(8); cv(3); e(9); e(10); e(11)
        k(f"""s_waitcnt lgkmcnt(4)
        v_mfma_f32_32x32x16_bf16 {v(O,16)}, {v(V0,4)}, {v(P,4)}, {v(O,16)}
        ds_read_b64_tr_b16 {v(V0,2)}, v{AV[0]} offset:{1024+TIMG*(t+1)}
        ds_read_b64_tr_b16 {v(V0+2,2)}, v{AV[1]} offset:{1024+TIMG*(t+1)}""")
        cv(4); e(12); cv(5); e(13); e(14); e(15)
        if t == 7:
            for r in (AKL, AKH, AV[0], AV[1]): k(f"v_add_u32 v{r}, {8*TIMG}, v{r}")
            k("s_sub_u32 s42, s42, 1\ns_add_u32 s40, s40, 1\ns_cmp_lg_u32 s42, 0")
        cv(6); cv(7)
    k("s_cbranch_scc1 K2_LOOP")
    k.check_loop("K2_LOOP")
    k(f"""s_waitcnt lgkmcnt(0)
    v_mfma_f32_32x32x16_bf16 {v(O,16)}, {v(V1,4)}, {v(P+4,4)}, {v(O,16)}
    s_mul_i32 s4, s4, 36
    s_add_u32 s5, s4, s3
    s_lshl_b32 s5, s5, 10
    s_lshr_b32 s7, s3, 2
    s_lshl_b32 s7, s7, 9
    s_and_b32 s31, s3, 3
    s_lshl_b32 s31, s31, 2
    s_add_u32 s7, s7, s31
    s_add_u32 s31, s4, 32
    s_lshl_b32 s31, s31, 10
    s_add_u32 s7, s7, s31
    v_cmp_gt_f32 vcc, {f2u(2.0**60)}, v{O+10}
    v_rcp_f32 v4, v{O+10}
    s_cmp_eq_u64 vcc, -1
    s_cbranch_scc1 K2_OUT
    s_cmp_ge_u32 s40, 100
    s_cbranch_scc1 K2_OUT
    s_mov_b32 s40, 100
    s_mov_b32 s41, 64
    s_lshr_b32 s4, s2, 5
    s_lshl_b32 s4, s4, 3
    s_add_u32 s4, s4, s6
    s_branch K2_RESTART
    K2_OUT:""")
    for r in range(10): k(f"v_mul_f32 v{O+r}, v4, v{O+r}")
    for r in range(5): k(f"v_cvt_pk_bf16_f32 v{P+r}, v{O+2*r}, v{O+2*r+1}")
    k(f"""buffer_store_dwordx4 {v(P,4)}, v2, s[44:47], s5 offen
    s_mov_b32 exec_hi, 0
    buffer_store_dword v{P+4}, v2, s[44:47], s7 offen
    s_endpgm
    K2_SYNC:
    s_cmp_eq_u32 s40, 1
    s_cbranch_scc1 K2_S1
    s_cmp_eq_u32 s40, 2
    s_cbranch_scc1 K2_S2
    s_waitcnt vmcnt(16)
    s_barrier
    s_branch K2_BACK
    K2_S1:
    s_waitcnt vmcnt(13)
    s_barrier
    s_branch K2_BACK
    K2_S2:
    s_waitcnt vmcnt(0)
    s_barrier
    s_branch K2_BACK""")
    tail(k)
    return k

def KU():
    k = K("ku_kernel", 144, 64, 36864, 192)
    head(k, 144)
    k(f"""s_lshl_b32 s5, s2, 6
    v_lshrrev_b32 v2, 2, v1
    v_mul_u32_u24 v2, 9216, v2
    v_and_b32 v3, 3, v1
    v_lshl_add_u32 v2, v3, 4, v2
    v_and_b32 v3, 31, v1
    v_lshrrev_b32 v8, 5, v1
    v_lshlrev_b32 v8, 4, v8
    v_mov_b32 v9, 0x100000
    v_mov_b32 v10, {2304*2}
    v_cmp_eq_u32 vcc, 0, v3
    v_cndmask_b32 v9, v9, v10, vcc
    v_mov_b32 v10, {1728*2}
    v_cmp_eq_u32 vcc, 4, v3
    v_cndmask_b32 v9, v9, v10, vcc
    v_add_u32 v8, v8, v9
    s_waitcnt lgkmcnt(0)""")
    k.srd(32, 16, 576*9216); k.srd(36, 28, 3456*2, MODB); k.srd(44, 28, 144*512, UVF)
    vm = VM(k)
    for s in range(36):
        k(f"s_mov_b32 m0, {s*1024}")
        vm.issue(f"buffer_load_dwordx4 {v(48+4*s,4)}, v8, s[36:39], 0 offen offset:{32*s}")
        vm.issue(f"buffer_load_dwordx4 v2, s[32:35], s5 offen lds", s)
        k(f"s_add_u32 s5, s5, {16*9216}")
    tr_lane(k, 4, 5, 6)
    k(f"""v_lshrrev_b32 v7, 1, v4
    v_lshl_add_u32 v5, v7, 3, v5
    v_lshlrev_b32 v5, 6, v5
    v_and_b32 v4, 1, v4
    v_lshl_add_u32 v5, v4, 5, v5
    v_lshl_add_u32 v5, v6, 3, v5""")
    for s in range(36):
        b = 16 + 4*(s % 2)
        vm.wait(s)
        k(f"""ds_read_b64_tr_b16 {v(b,2)}, v5 offset:{1024*s}
        ds_read_b64_tr_b16 {v(b+2,2)}, v5 offset:{1024*s+256}
        s_waitcnt lgkmcnt(0)
        v_mfma_f32_32x32x16_bf16 v[32:47], {v(48+4*s,4)}, {v(b,4)}, {'0' if s==0 else 'v[32:47]'}""")
    k(f"""s_lshl_b32 s5, s2, 9
    v_lshlrev_b32 v2, 3, v1
    v_cvt_pk_bf16_f32 v9, v32, 0
    v_lshlrev_b32 v8, 16, v9
    v_sub_f32 v8, v32, v8
    v_cvt_pk_bf16_f32 v8, v32, v8
    buffer_store_dwordx2 v[8:9], v2, s[44:47], s5 offen""")
    tail(k)
    return k

def K3():
    XL = 110592; EX = XL + 12288
    k = K("k3_kernel", 192, 256, EX+24576, 224)
    head(k, 192)
    OFR=16; ACC=88; PRM=136; WB=184
    k(f"""s_and_b32 s3, s2, 7
    s_lshl_b32 s3, s3, 2
    s_bfe_u32 s4, s2, 0x20003
    s_add_u32 s3, s3, s4             ; rb
    s_lshr_b32 s4, s2, 5             ; cbk
    s_and_b32 s5, s6, 1              ; tt
    s_lshr_b32 s7, s6, 1             ; kh
    s_lshl_b32 s50, s3, 1
    s_add_u32 s50, s50, s5
    s_mul_i32 s51, s50, {36*1024}
    s_lshl_b32 s30, s7, 14
    s_add_u32 s52, s51, s30
    s_lshl_b32 s30, s7, 11
    s_add_u32 s53, s51, s30
    s_add_u32 s53, s53, {32*1024}
    s_mul_i32 s54, s7, 288
    s_lshl_b32 s30, s5, 4
    s_add_u32 s54, s54, s30
    s_mul_i32 s55, s54, 192
    s_mul_i32 s54, s54, 1152
    s_mul_i32 s30, s4, 192
    s_add_u32 s54, s54, s30
    s_lshl_b32 s56, s3, 6
    s_lshl_b32 s31, s6, 4
    s_add_u32 s56, s56, s31
    s_mul_i32 s56, s56, 1152
    s_add_u32 s56, s56, s30          ; x soffset
    s_mul_i32 s57, s6, 3072
    s_mul_i32 s58, s4, 6
    s_mul_i32 s31, s7, 3
    s_add_u32 s58, s58, s31
    s_lshl_b32 s59, s58, 6
    v_lshlrev_b32 v2, 4, v1
    v_lshrrev_b32 v11, 5, v1
    v_lshlrev_b32 v12, 5, v11""")
    for n in range(192): assert (n*5462)>>16 == n//12
    for j in range(3):
        k(f"""v_add_u32 v3, {64*j}, v1
        v_mul_u32_u24 v4, 5462, v3
        v_lshrrev_b32 v4, 16, v4
        v_lshlrev_b32 v3, 4, v3
        v_mul_u32_u24 v4, {1152-192}, v4
        v_add_u32 v{8+j}, v3, v4""")
    k("s_waitcnt lgkmcnt(0)")
    k.srd(32, 28, 64*36*1024, OF); k.srd(36, 12, 576*1152); k.srd(44, 8, 2048*1152); k.srd(60, 28, 3456*4, MODF)
    vm = VM(k)
    stg = [range(0,5), range(5,10), range(10,18)]
    for st in range(3):
        for f in stg[st]:
            if f < 16:
                if f % 4 == 0 and f: k("s_add_u32 s52, s52, 4096")
                vm.issue(f"buffer_load_dwordx4 {v(OFR+4*f,4)}, v2, s[32:35], s52 offen offset:{1024*(f%4)}")
            else: vm.issue(f"buffer_load_dwordx4 {v(OFR+4*f,4)}, v2, s[32:35], s53 offen offset:{1024*(f-16)}")
        for j in range(3*st, 3*st+3):
            for p in range(3):
                k(f"s_add_u32 m0, s55, {j*6144+p*1024}")
                if p == 0 and j: k(f"s_add_u32 s54, s54, {32*1152}")
                vm.issue(f"buffer_load_dwordx4 v{8+p}, s[36:39], s54 offen lds", ("st", st))
    for p in range(3):
        k(f"s_add_u32 m0, s57, {XL+p*1024}\ns_nop 0")
        vm.issue(f"buffer_load_dwordx4 v{8+p}, s[44:47], s56 offen lds", "x")
    k(f"s_add_u32 s30, s59, {1152*4}\ns_add_u32 s31, s59, {2304*4}")
    for f in range(3):
        for h2 in range(2):
            vm.issue(f"buffer_load_dwordx4 {v(PRM+16*f+4*h2,4)}, v12, s[60:63], s30 offen offset:{64*f+16*h2}")
            vm.issue(f"buffer_load_dwordx4 {v(PRM+16*f+8+4*h2,4)}, v12, s[60:63], s31 offen offset:{64*f+16*h2}", "prm")
    tr_lane(k, 4, 5, 6); pi_c(k, 6, 7)
    k(f"""v_lshl_add_u32 v5, v11, 3, v5
    v_mul_u32_u24 v5, 192, v5
    v_lshl_add_u32 v5, v6, 3, v5
    s_mul_i32 s30, s7, {288*192}
    v_add_u32 v5, s30, v5
    v_and_b32 v4, 1, v4
    s_mul_i32 s30, s7, 3
    v_add_u32 v4, s30, v4""")
    for j in range(3):
        k(f"""v_add_u32 v6, {2*j}, v4
        v_subrev_u32 v7, 6, v6
        v_min_u32 v6, v6, v7
        v_lshl_add_u32 v{8+j}, v6, 5, v5""")
    def rd(f):
        b = WB + 12*(f % 3)
        if f == 16:
            k(f"v_mul_u32_u24 v7, {64*192}, v11")
            for j in range(3): k(f"v_add_u32 v{8+j}, v7, v{8+j}")
        for j in range(3):
            for i in range(2):
                row = 18*f + 2*(f & 1) + 4*i if f < 16 else 36*(4*(f-16)+i) + 16
                k(f"ds_read_b64_tr_b16 {v(b+4*j+2*i,2)}, v{8+j} offset:{row*192}")
    first = {0: 0, 5: 1, 10: 2}
    def rds(f):
        if f in first: vm.wait(("st", first[f])); k("s_barrier")
        rd(f)
    rds(0); rds(1)
    for f in range(18):
        if f+2 < 18: rds(f+2)
        k(f"s_waitcnt lgkmcnt({6*min(2,17-f)})")
        b = WB + 12*(f % 3)
        for j in range(3):
            A = v(ACC+16*j,16)
            k(f"v_mfma_f32_32x32x16_bf16 {A}, {v(b+4*j,4)}, {v(OFR+4*f,4)}, {'0' if f==0 else A}")
    k(f"""s_mul_i32 s30, s6, 6144
    s_add_u32 s30, s30, {EX}
    v_add_u32 v3, s30, v2
    s_xor_b32 s31, s6, 2
    s_mul_i32 s31, s31, 6144
    s_add_u32 s31, s31, {EX}
    v_add_u32 v4, s31, v2
    v_and_b32 v5, 31, v1
    v_mul_u32_u24 v6, 192, v5
    v_lshl_add_u32 v6, v11, 4, v6
    s_mul_i32 s30, s5, {32*192}
    s_mul_i32 s31, s7, 96
    s_add_u32 s30, s30, s31
    s_add_u32 s30, s30, {XL}
    v_add_u32 v6, s30, v6""")
    for j in range(6): k(f"ds_write_b128 v3, {v(ACC+24+4*j,4)} offset:{1024*j}")
    k.srd(32, 28, 64*36*1024, X1F); k.srd(36, 28, 64*36*1024, YF); k.srd(44, 28, 64*12*256, ST2)
    k(f"""s_lshl_b32 s58, s58, 10
    s_add_u32 s58, s58, s51
    s_mul_i32 s50, s50, 12
    s_lshl_b32 s4, s4, 1
    s_add_u32 s50, s50, s4
    s_add_u32 s50, s50, s7
    s_lshl_b32 s50, s50, 8
    s_mov_b32 s31, 0xffff0000
    s_waitcnt vmcnt(0) lgkmcnt(0)
    s_barrier""")
    for j in range(6): k(f"ds_read_b128 {v(OFR+4*j,4)}, v4 offset:{1024*j}")
    for f in range(3): k(f"ds_read_b128 {v(OFR+24+4*f,4)}, v6 offset:{32*f}")
    k("s_waitcnt lgkmcnt(3)")
    for j in range(12): k(f"v_pk_add_f32 {v(ACC+2*j,2)}, {v(ACC+2*j,2)}, {v(OFR+2*j,2)}")
    k("s_waitcnt lgkmcnt(0)")
    T = OFR + 40;
    for f in range(3):
        xr = OFR+24+4*f
        for j in range(4): k(f"v_lshlrev_b32 v{T+2*j}, 16, v{xr+j}\nv_and_b32 v{T+2*j+1}, s31, v{xr+j}")
        for j in range(4): k(f"v_pk_fma_f32 {v(T+2*j,2)}, {v(ACC+8*f+2*j,2)}, {v(PRM+16*f+2*j,2)}, {v(T+2*j,2)}")
        for j in range(4): k(f"v_cvt_pk_bf16_f32 v{xr+j}, v{T+2*j}, v{T+2*j+1}")
        k(f"buffer_store_dwordx4 {v(xr,4)}, v2, s[32:35], s58 offen offset:{1024*f}")
        for j in range(4): k(f"v_lshlrev_b32 v{T+2*j}, 16, v{xr+j}\nv_and_b32 v{T+2*j+1}, s31, v{xr+j}")
        for j in range(4):
            if f == 0 and j == 0: k(f"v_pk_mul_f32 v[14:15], {v(T,2)}, {v(T,2)}\nv_mov_b32 v12, v{T}\nv_mov_b32 v13, v{T+1}")
            else: k(f"v_pk_fma_f32 v[14:15], {v(T+2*j,2)}, {v(T+2*j,2)}, v[14:15]\nv_pk_add_f32 v[12:13], v[12:13], {v(T+2*j,2)}")
        for j in range(4): k(f"v_pk_mul_f32 {v(T+2*j,2)}, {v(T+2*j,2)}, {v(PRM+16*f+8+2*j,2)}")
        for j in range(4): k(f"v_cvt_pk_bf16_f32 v{OFR+4*f+j}, v{T+2*j}, v{T+2*j+1}")
        k(f"buffer_store_dwordx4 {v(OFR+4*f,4)}, v2, s[36:39], s58 offen offset:{1024*f}")
    k(f"""v_add_f32 v12, v12, v13
    v_add_f32 v13, v14, v15
    v_mov_b32 v14, v12
    v_mov_b32 v15, v13
    v_lshlrev_b32 v5, 3, v5
    v_permlane32_swap_b32 v12, v14
    v_permlane32_swap_b32 v13, v15
    v_pk_add_f32 v[12:13], v[12:13], v[14:15]
    s_mov_b32 exec_hi, 0
    buffer_store_dwordx2 v[12:13], v5, s[44:47], s50 offen""")
    tail(k)
    return k

def later():
    ks = [K2(), KU(), K3()]
    try:
        from k456 import K4, K5, K6
        ks += [K4(), K5(), K6()]
    except ImportError: pass
    return ks
```

```python
from lib import *
from k01 import *
from k26 import VM, pi_c

def K4():
    SL = 24576; NS = 6
    k = K("k4_kernel", 256, 256, SL*NS, 176, na=144)
    head(k, 256)
    ACC=[32, 64]; WB=96; UV=128; ST=148; PK=160; T=168
    BX=20; NRL=22; SIG=23
    k(f"""s_and_b32 s3, s2, 1
    s_lshl_b32 s3, s3, 3
    s_bfe_u32 s4, s2, 0x30003
    s_add_u32 s3, s3, s4             ; rb
    s_bfe_u32 s4, s2, 0x20001
    s_lshl_b32 s4, s4, 2
    s_lshr_b32 s5, s2, 6
    s_add_u32 s4, s4, s5             ; fb
    s_lshl_b32 s3, s3, 2
    s_add_u32 s3, s3, s6
    s_and_b32 s5, s4, 1
    s_mul_i32 s4, s4, 9
    s_add_u32 s50, s4, s5
    s_xor_b32 s5, s5, 1
    s_lshl_b32 s5, s5, 3
    s_add_u32 s51, s4, s5
    s_mul_i32 s52, s3, {36*1024}     ; y base
    s_mul_i32 s53, s3, {12*256}
    s_lshl_b32 s54, s50, 9
    s_lshl_b32 s55, s51, 9
    s_mul_i32 s30, s6, {8*9216}
    s_lshl_b32 s56, s50, 6
    s_add_u32 s56, s56, s30
    s_lshl_b32 s57, s51, 6
    s_lshl_b32 s30, s30, 1
    s_add_u32 s57, s57, s30
    s_lshl_b32 s58, s6, 10
    s_mul_i32 s30, s3, {2*147456}
    s_lshl_b32 s59, s50, 10
    s_add_u32 s59, s59, s30
    s_lshl_b32 s64, s51, 10
    s_add_u32 s64, s64, s30
    v_lshlrev_b32 v2, 4, v1
    v_lshlrev_b32 v3, 3, v1
    v_lshrrev_b32 v11, 5, v1         ; hf
    v_and_b32 v12, 31, v1            ; tok
    v_mul_u32_u24 v4, {6*256}, v11
    v_lshl_add_u32 v4, v12, 3, v4
    v_lshrrev_b32 v5, 3, v1
    v_mul_u32_u24 v5, 9216, v5
    v_bfe_u32 v6, v1, 4, 1
    v_lshlrev_b32 v6, 2, v6
    v_and_b32 v7, 7, v1
    v_xor_b32 v6, v6, v7
    v_lshl_add_u32 v8, v6, 4, v5
    v_lshrrev_b32 v5, 2, v1
    v_mul_u32_u24 v5, 9216, v5
    v_and_b32 v6, 3, v1
    v_lshl_add_u32 v9, v6, 4, v5
    s_waitcnt lgkmcnt(0)""")
    k.srd(32, 28, 64*36*1024, YF); k.srd(36, 16, 576*9216); k.srd(44, 28, 64*12*256, ST2); k.srd(60, 28, 144*512, UVF)
    k.srd(68, 28, 128*147456, HF)
    vm = VM(k)
    for j in range(6): vm.issue(f"buffer_load_dwordx2 {v(ST+2*j,2)}, v4, s[44:47], s53 offen offset:{256*j}", "st")
    for j in range(8): vm.issue(f"buffer_load_dwordx2 {v(UV+2*j,2)}, v3, s[60:63], s54 offen offset:{512*j}")
    vm.issue(f"buffer_load_dwordx2 {v(UV+16,2)}, v3, s[60:63], s55 offen", "uv")
    def dma_list(n):
        g, st = divmod(n, 3); slot = n % NS; L = []
        if g < 4:
            for j in range(6):
                L.append((f"s_add_u32 m0, s58, {slot*SL+4096*j}\ns_add_u32 s31, s56, {(192*st+32*j)*9216+128*g}", f"buffer_load_dwordx4 v8, s[36:39], s31 offen lds", ("w", n)))
        else:
            for j in range(3):
                L.append((f"s_add_u32 m0, s58, {slot*SL+4096*j}\ns_add_u32 s31, s57, {(192*st+64*j)*9216}", f"buffer_load_dwordx4 v9, s[36:39], s31 offen lds", ("w", n)))
        return L
    def dma(e): k(e[0]); vm.issue(e[1], e[2])
    for st in range(4):
        L = dma_list(st)
        for j in range(6):
            dma(L[j])
            if st < 3:
                for s in range(12*st+2*j, 12*st+2*j+2):
                    if s % 4 == 0 and s: k("s_add_u32 s52, s52, 4096")
                    vm.issue(f"buffer_load_dwordx4 {a(4*s,4)}, v2, s[32:35], s52 offen offset:{1024*(s%4)}", ("y", s))
    tr_lane(k, 4, 5, 6);
    k(f"""v_lshl_add_u32 v7, v11, 3, v5
    v_and_b32 v4, 1, v4
    v_lshlrev_b32 v4, 5, v4
    v_lshl_add_u32 v4, v6, 3, v4
    v_lshl_add_u32 v13, v7, 6, v4
    v_lshl_add_u32 v14, v7, 7, v4
    v_lshrrev_b32 v5, 1, v5
    v_lshl_add_u32 v14, v5, 6, v14
    v_xor_b32 v15, 64, v14
    v_add_u32 v16, {2*SL}, v14
    v_add_u32 v17, {2*SL}, v15
    v_add_u32 v18, {4*SL}, v14
    v_add_u32 v19, {4*SL}, v15
    v_add_u32 v24, {2*SL}, v13
    v_lshrrev_b32 v4, 4, v12
    s_mov_b32 s30, 147456
    v_mul_lo_u32 v4, v4, s30
    v_and_b32 v5, 15, v12
    v_lshl_add_u32 v4, v11, 8, v4
    v_lshl_add_u32 v10, v5, 4, v4""")
    vm.wait("st")
    k(f"""v_pk_add_f32 {v(ST,2)}, {v(ST,2)}, {v(ST+2,2)}
    v_pk_add_f32 {v(ST+4,2)}, {v(ST+4,2)}, {v(ST+6,2)}
    v_pk_add_f32 {v(ST+8,2)}, {v(ST+8,2)}, {v(ST+10,2)}
    v_pk_add_f32 {v(ST,2)}, {v(ST,2)}, {v(ST+4,2)}
    v_pk_add_f32 {v(ST,2)}, {v(ST,2)}, {v(ST+8,2)}
    v_mov_b32 v{ST+2}, v{ST}
    v_mov_b32 v{ST+3}, v{ST+1}
    v_cmp_gt_u32 vcc, 32, v1
    v_permlane32_swap_b32 v{ST}, v{ST+2}
    v_permlane32_swap_b32 v{ST+1}, v{ST+3}
    v_pk_add_f32 {v(ST,2)}, {v(ST,2)}, {v(ST+2,2)}
    v_mul_f32 v{ST}, {f2u(-1/576.)}, v{ST}        ; -mu
    v_mul_f32 v{ST+1}, {f2u(1/576.)}, v{ST+1}
    v_fma_f32 v{ST+1}, -v{ST}, v{ST}, v{ST+1}
    v_max_f32 v{ST+1}, 0, v{ST+1}
    v_add_f32 v{ST+1}, {f2u(1e-5)}, v{ST+1}
    v_sqrt_f32 v{SIG}, v{ST+1}
    v_rsq_f32 v{NRL}, v{ST+1}
    v_cndmask_b32 v{ST}, v{SIG}, v{ST}, vcc
    v_mul_f32 v{NRL}, {f2u(-LOG2E)}, v{NRL}
    v_cvt_pk_bf16_f32 v{BX}, v{ST}, v{ST}
    v_lshlrev_b32 v{ST+1}, 16, v{BX}
    v_sub_f32 v{ST+1}, v{ST}, v{ST+1}
    v_cvt_pk_bf16_f32 v{BX+1}, v{ST+1}, 0""")
    steps = [(g, s) for g in range(5) for s in range(36)]
    pend = []
    def rd(i):
        g, s = steps[i]; n = 3*g + s//12; slot = n % NS; b = WB + 8*(i % 4)
        if s % 12 == 0:
            vm.wait(("w", n)); k("s_barrier")
            if n+4 < 15 and n >= 0: pend.extend(dma_list(n+4))
        ks = s % 12
        if g < 4:
            for t in range(2):
                for h in range(2): k(f"ds_read_b64_tr_b16 {v(b+4*t+2*h,2)}, v{14+2*(slot//2)+t} offset:{(slot%2)*SL+2048*ks+512*h}")
        else:
            ar = 13 if slot < 2 else 24
            for h in range(2): k(f"ds_read_b64_tr_b16 {v(b+2*h,2)}, v{ar} offset:{(slot%2)*SL+1024*ks+256*h}")
    def nrd(i): return 4 if steps[i][0] < 4 else 2
    def silu_ops(g):
        acc = ACC[g % 2]; nt = 2 if g < 4 else 1; ops = []
        for q in range(2*nt):
            pk = PK + 4*(q % 2)
            for hh in range(2):
                r0 = acc + 8*q + 4*hh; t0 = T + 4*hh
                for j in range(4): ops.append(f"v_mul_f32 v{t0+j}, v{NRL}, v{r0+j}")
                for j in range(4): ops.append(f"v_exp_f32 v{t0+j}, v{t0+j}")
                for j in range(4): ops.append(f"v_fma_f32 v{t0+j}, v{t0+j}, v{SIG}, v{SIG}")
                for j in range(4): ops.append(f"v_rcp_f32 v{t0+j}, v{t0+j}")
                for j in range(4): ops.append(f"v_mul_f32 v{t0+j}, v{r0+j}, v{t0+j}")
                for j in range(2): ops.append(f"v_cvt_pk_bf16_f32 v{pk+2*hh+j}, v{t0+2*j}, v{t0+2*j+1}")
            so = "s59" if g < 4 else "s64"
            ops.append(("st", f"buffer_store_dwordx4 {v(pk,4)}, v10, s[68:71], {so} offen offset:{512*q}"))
            if q == 3: ops.append("s_add_u32 s59, s59, 2048")
        return ops
    def emit(op):
        if isinstance(op, tuple): vm.issue(op[1])
        else: k(op)
    LA = 3
    for i in range(LA): rd(i)
    ops = []
    for i, (g, s) in enumerate(steps):
        nt = 2 if g < 4 else 1; acc = ACC[g % 2]; b = WB + 8*(i % 4)
        if s == 0:
            assert not ops
            if g == 0: vm.wait("uv")
            for t in range(nt):
                k(f"v_mfma_f32_32x32x8_bf16 {v(acc+16*t,16)}, {v(UV+4*g+2*t,2)}, {v(BX,2)}, 0")
            if g: ops = silu_ops(g-1); tot = len(ops); done = 0
        if i+LA < len(steps): rd(i+LA)
        if g == 0: vm.wait(("y", s))
        out = sum(nrd(j) for j in range(i+1, min(i+LA+1, len(steps))))
        k(f"s_waitcnt lgkmcnt({out})")
        for t in range(nt):
            k(f"v_mfma_f32_32x32x16_bf16 {v(acc+16*t,16)}, {v(b+4*t,4)}, {a(4*s,4)}, {v(acc+16*t,16)}")
            if t == 0 and pend: dma(pend.pop(0))
            if ops and s >= 2:
                tgt = (tot * ((s-2)*nt+t+1) + 33*nt - 1) // (33*nt)
                while ops and done < tgt: emit(ops.pop(0)); done += 1
    assert not ops and not pend
    for op in silu_ops(4): emit(op)
    tail(k)
    return k

def K5():
    SL = 36864
    k = K("k5_kernel", 256, 256, SL*4, 200, na=0)
    head(k, 256)
    ACC=24; HB=96; WB=192-24+0
    NH = 9; WB = 168; NW = 8
    k(f"""s_and_b32 s3, s2, 1
    s_lshl_b32 s3, s3, 3
    s_bfe_u32 s4, s2, 0x30003
    s_add_u32 s3, s3, s4             ; rb
    s_bfe_u32 s4, s2, 0x20001        ; sp
    s_lshr_b32 s5, s2, 6             ; cb
    s_lshl_b32 s3, s3, 2
    s_add_u32 s3, s3, s6
    s_lshl_b32 s3, s3, 1
    s_mul_i32 s50, s3, 147456
    s_mul_i32 s30, s4, {36*1024}
    s_add_u32 s50, s50, s30          ; H base t0
    s_add_u32 s51, s50, 147456
    s_mul_i32 s52, s4, {1152*1152}
    s_mul_i32 s30, s6, {32*1152}
    s_add_u32 s52, s52, s30
    s_mul_i32 s30, s5, 288
    s_add_u32 s52, s52, s30          ; W2 soffset
    s_mul_i32 s53, s6, 9216
    s_mul_i32 s54, s4, {2048*1152}
    s_lshl_b32 s30, s3, 2
    s_add_u32 s30, s30, s5
    s_mul_i32 s30, s30, 4608
    s_add_u32 s54, s54, s30
    s_add_u32 s55, s54, {4*4608}
    v_lshlrev_b32 v2, 4, v1""")
    for n in range(576): assert (n*3641)>>16 == n//18
    for j in range(9):
        k(f"""v_add_u32 v3, {64*j}, v1
        v_mul_u32_u24 v4, 3641, v3
        v_lshrrev_b32 v4, 16, v4
        v_lshlrev_b32 v3, 4, v3
        v_mul_u32_u24 v4, {1152-288}, v4
        v_add_u32 v{8+j}, v3, v4""")
    k("s_waitcnt lgkmcnt(0)")
    k.srd(32, 28, 128*147456, HF); k.srd(36, 18, 4608*1152); k.srd(44, 28, 4*2048*1152, PART)
    vm = VM(k)
    def dma_list(n):
        return [(f"s_add_u32 m0, s53, {(n%4)*SL+1024*j}" + (f"\ns_add_u32 s52, s52, {128*1152}" if j == 0 and n else "\ns_nop 0"),
                 f"buffer_load_dwordx4 v{8+j}, s[36:39], s52 offen lds", ("w", n)) for j in range(9)]
    def dma(e): k(e[0]); vm.issue(e[1], e[2])
    def hld(s):
        if s % 4 == 0 and s: k("s_add_u32 s50, s50, 4096\ns_add_u32 s51, s51, 4096")
        for t in range(2): vm.issue(f"buffer_load_dwordx4 {v(HB+8*(s%NH)+4*t,4)}, v2, s[32:35], s{50+t} offen offset:{1024*(s%4)}", ("h", s))
    for st in range(2):
        for e in dma_list(st): dma(e)
        for s in range(4*st, 4*st+4): hld(s)
    tr_lane(k, 4, 5, 6)
    k(f"""v_lshrrev_b32 v7, 1, v4
    v_lshl_add_u32 v5, v7, 4, v5
    v_and_b32 v4, 1, v4
    v_lshl_add_u32 v5, v4, 2, v5
    v_mul_u32_u24 v5, 288, v5
    v_lshl_add_u32 v18, v6, 3, v5
    v_add_u32 v19, {SL}, v18
    v_add_u32 v20, {2*SL}, v18
    v_add_u32 v21, {3*SL}, v18
    v_lshlrev_b32 v3, 3, v1""")
    units = [(s, t) for s in range(36) for t in range(9)]
    pend = []
    def rd(i):
        s, t = units[i]; n = s // 4
        if s % 4 == 0 and t == 0:
            vm.wait(("w", n)); k("s_barrier")
            if n+2 < 9: pend.extend(dma_list(n+2))
        b = WB + 4*(i % NW)
        for h in range(2): k(f"ds_read_b64_tr_b16 {v(b+2*h,2)}, v{18+n%4} offset:{9216*(s%4)+32*t+8*288*h}")
    LA = 6
    for i in range(LA): rd(i)
    for i, (s, t) in enumerate(units):
        if i+LA < len(units): rd(i+LA)
        if t == 0: vm.wait(("h", s))
        k(f"s_waitcnt lgkmcnt({2*min(LA, len(units)-1-i)})")
        b = WB + 4*(i % NW)
        for u in range(2):
            A = v(ACC+36*u+4*t,4)
            k(f"v_mfma_f32_16x16x32_bf16 {A}, {v(b,4)}, {v(HB+8*(s%NH)+4*u,4)}, {'0' if s==0 else A}")
        if t == 1 and s+8 < 36: hld(s+8)
        elif t % 2 == 0 and pend: dma(pend.pop(0))
    assert not pend
    for u in range(2):
        for j in range(18): k(f"v_cvt_pk_bf16_f32 v{HB+20*u+j}, v{ACC+36*u+2*j}, v{ACC+36*u+2*j+1}")
        for p in range(4): k(f"buffer_store_dwordx4 {v(HB+20*u+4*p,4)}, v2, s[44:47], s{54+u} offen offset:{1024*p}")
        k(f"s_add_u32 s{54+u}, s{54+u}, 4096\nbuffer_store_dwordx2 {v(HB+20*u+16,2)}, v3, s[44:47], s{54+u} offen")
    tail(k)
    return k

def K6():
    k = K("k6_kernel", 256, 128, 0, 160)
    head(k, 256)
    PB=8; X=88; G=108; T=144
    k(f"""s_lshl_b32 s3, s2, 1
    s_add_u32 s3, s3, s6
    s_and_b32 s5, s3, 3              ; cb
    s_lshr_b32 s4, s3, 2             ; T
    s_mul_i32 s50, s3, 4608
    s_lshr_b32 s30, s4, 1
    s_mul_i32 s51, s30, 36
    s_mul_i32 s30, s5, 9
    s_add_u32 s51, s51, s30
    s_lshl_b32 s51, s51, 10
    s_and_b32 s30, s4, 1
    s_lshl_b32 s30, s30, 8
    s_add_u32 s51, s51, s30          ; x1 soffset
    s_mul_i32 s52, s5, 576
    s_add_u32 s52, s52, {2880*4}
    s_mul_i32 s53, s4, {16*1152}
    s_mul_i32 s30, s5, 288
    s_add_u32 s53, s53, s30
    v_lshlrev_b32 v2, 4, v1
    v_lshlrev_b32 v3, 3, v1
    v_lshrrev_b32 v4, 4, v1          ; q
    v_and_b32 v5, 15, v1             ; tok
    v_lshrrev_b32 v6, 1, v4
    v_lshlrev_b32 v6, 9, v6
    v_lshl_add_u32 v6, v5, 4, v6
    v_and_b32 v7, 1, v4
    v_lshl_add_u32 v6, v7, 3, v6     ; x1 voffset
    v_mul_u32_u24 v7, 1152, v5
    v_lshl_add_u32 v7, v4, 3, v7
    v_lshlrev_b32 v4, 4, v4
    s_waitcnt lgkmcnt(0)""")
    k.srd(32, 28, 4*2048*1152, PART); k.srd(36, 28, 64*36*1024, X1F); k.srd(44, 28, 3456*4, MODF); k.srd(56, 24, 2048*1152)
    for sp in range(4):
        for p in range(4): k(f"buffer_load_dwordx4 {v(PB+20*sp+4*p,4)}, v2, s[32:35], s50 offen offset:{1024*p}")
        k(f"s_add_u32 s30, s50, 4096\nbuffer_load_dwordx2 {v(PB+20*sp+16,2)}, v3, s[32:35], s30 offen\ns_add_u32 s50, s50, {2048*1152}")
    for t in range(9):
        if t % 4 == 0 and t: k("s_add_u32 s51, s51, 4096")
        k(f"buffer_load_dwordx2 {v(X+2*t,2)}, v6, s[36:39], s51 offen offset:{1024*(t%4)}")
        k(f"buffer_load_dwordx4 {v(G+4*t,4)}, v4, s[44:47], s52 offen offset:{64*t}")
    k("s_mov_b32 s31, 0xffff0000\ns_waitcnt vmcnt(0)")
    for t in range(9):
        for j in range(2):
            r = 2*t+j; tt = T + 8*j
            for sp in range(4): k(f"v_lshlrev_b32 v{tt+2*sp}, 16, v{PB+20*sp+r}\nv_and_b32 v{tt+2*sp+1}, s31, v{PB+20*sp+r}")
            k(f"""v_pk_add_f32 {v(tt,2)}, {v(tt,2)}, {v(tt+2,2)}
            v_pk_add_f32 {v(tt+4,2)}, {v(tt+4,2)}, {v(tt+6,2)}
            v_lshlrev_b32 v{tt+2}, 16, v{X+r}
            v_and_b32 v{tt+3}, s31, v{X+r}
            v_pk_add_f32 {v(tt,2)}, {v(tt,2)}, {v(tt+4,2)}
            v_pk_fma_f32 {v(tt,2)}, {v(tt,2)}, {v(G+2*r,2)}, {v(tt+2,2)}
            v_cvt_pk_bf16_f32 v{X+r}, v{tt}, v{tt+1}""")
        k(f"buffer_store_dwordx2 {v(X+2*t,2)}, v7, s[56:59], s53 offen offset:{32*t}")
    tail(k)
    return k
```

```python
import re
TRANS = ("v_exp_", "v_log_", "v_rcp_", "v_rsq_", "v_sqrt_", "v_sin_", "v_cos_")
def passes(op):
    if "_2b_" in op: return 16
    if "32x32" in op: return 8
    if "16x16" in op: return 4
    raise ValueError(op)
RD = {4: 8, 8: 12, 16: 20}
RC = {4: 6, 8: 10, 16: 18}
WARC = {4: 3, 8: 7, 16: 15}
def regs(tok):
    tok = tok.strip()
    m = re.fullmatch(r"-?\|?([vas])(\d+)\|?", tok)
    if m: return {(m.group(1), int(m.group(2)))}
    m = re.fullmatch(r"-?([vas])\[(\d+):(\d+)\]", tok)
    if m: return {(m.group(1), i) for i in range(int(m.group(2)), int(m.group(3)) + 1)}
    if tok == "vcc": return {("s", 106), ("s", 107)}
    if tok == "m0": return {("s", 124)}
    if tok == "exec": return {("s", 126), ("s", 127)}
    return set()
class Ins:
    def __init__(s, text):
        s.text = text
        t = text.split(";")[0].strip()
        s.op = t.split()[0]
        rest = t[len(s.op):].strip()
        ops = [o.strip() for o in re.split(r",(?![^\[]*\])", rest)] if rest else []
        if ops:
            last = ops[-1].split()
            s.mods = " ".join(last[1:]); ops[-1] = last[0] if last else ""
        else: s.mods = ""
        s.ops = ops
        op = s.op
        s.mfma = op.startswith("v_mfma")
        s.valu = op.startswith("v_") and not s.mfma
        s.trans = op.startswith(TRANS)
        s.salu = op.startswith("s_")
        s.vmem = op.startswith(("buffer_", "global_"))
        s.ds = op.startswith("ds_")
        s.dpp = "row_" in s.mods or "quad_perm" in s.mods
        s.states = 1
        if op == "s_nop": s.states = int(ops[0]) + 1
        R = [regs(o) for o in ops]
        s.w = set(); s.r = set(); s.c = set(); s.ab = set(); s.sdata = set()
        if s.mfma:
            s.w = R[0]; s.ab = R[1] | R[2]; s.c = R[3]; s.r = s.ab | s.c; s.p = passes(op)
        elif s.valu:
            if "swap" in op: s.w = R[0] | R[1]; s.r = R[0] | R[1]
            elif op.startswith("v_cmp"): s.w = R[0]; s.r = set().union(*R[1:])
            elif "_co_" in op: s.w = R[0] | R[1]; s.r = set().union(*R[2:])
            else:
                s.w = R[0]; s.r = set().union(*R[1:]) if len(R) > 1 else set()
                if op.startswith(("v_fmac", "v_dot2c", "v_writelane")) or s.dpp: s.r |= R[0]
        elif s.vmem:
            if "lds" in s.mods.split(): s.r = set().union(*R) | regs("m0"); s.dma = True
            elif "store" in op:
                s.r = set().union(*R)
                d = R[0] if op.startswith("buffer") else R[1]
                if "x4" in op or "x3" in op: s.sdata = d
            elif "atomic" in op: s.r = set().union(*R); s.w = R[0] if "sc0" in s.mods else set()
            else: s.w = R[0]; s.r = set().union(*R[1:])
        elif s.ds:
            if "read" in op or "permute" in op or "swizzle" in op: s.w = R[0]; s.r = set().union(*R[1:])
            else: s.r = set().union(*R)
        elif s.salu and R:
            if op.startswith(("s_cmp", "s_cbranch", "s_branch", "s_waitcnt", "s_barrier", "s_setprio", "s_sleep")): s.r = set().union(*R)
            else: s.w = R[0]; s.r = set().union(*R[1:]) if len(R) > 1 else set()
            if "saveexec" in op: s.w |= regs("exec")
def need(p, c):
    n = 0
    vw = {x for x in p.w if x[0] != "s"}; sw = {x for x in p.w if x[0] == "s"}
    if p.valu:
        if c.mfma and vw & c.r: n = max(n, 2)
        if p.trans and (c.valu and not c.trans) and vw & c.r: n = max(n, 1)
        if p.trans and (c.vmem or c.ds) and vw & c.r: n = max(n, 1)
        if c.valu and ("permlane" in c.op or c.dpp) and vw & c.r: n = max(n, 2)
        if c.valu and c.op.startswith(("v_readfirstlane", "v_readlane")) and vw & c.r: n = max(n, 1)
        if sw and c.valu and sw & c.r: n = max(n, 4 if "lane" in c.op and "first" not in c.op and "perm" not in c.op else 2)
        if sw and c.vmem and sw & c.r: n = max(n, 5)
        if sw and c.salu and sw & c.r: n = max(n, 1)
        if ("op_sel" in p.mods and "pk_" not in p.op or "sdwa" in p.op) and c.valu and vw & (c.r | c.w): n = max(n, 1)
        if p.op.startswith("v_dot") and (c.valu or c.mfma) and vw & (c.r | c.w) and not (c.op == p.op): n = max(n, 3)
    if p.mfma:
        if c.mfma:
            if p.w & c.ab: n = max(n, RD[p.p])
            if p.w & c.c and not (p.w == c.c and p.p == c.p): n = max(n, RC[p.p])
            if p.w & c.w and not (p.w & c.c): n = max(n, RC[p.p])
        elif c.valu or c.vmem or c.ds:
            if p.w & (c.r | c.w): n = max(n, RD[p.p])
        if c.valu and p.c & c.w: n = max(n, WARC[p.p])
    if p.salu and ("s", 124) in p.w and c.vmem and getattr(c, "dma", False): n = max(n, 1)
    if p.sdata and (c.valu or c.ds or c.vmem or c.mfma) and p.sdata & c.w: n = max(n, 2)
    if (p.vmem or p.ds) and c.valu and c.dpp and vw & c.r: n = max(n, 0)
    return n
class K:
    def __init__(s, name, grid, block, lds, nv, na=0, ns=96):
        s.name, s.grid, s.block, s.lds, s.nv, s.na, s.ns = name, grid, block, lds, nv, na, ns
        s.L = []
        s.nops = 0
    def __call__(s, text):
        for ln in text.split("\n"):
            t = ln.strip()
            if not t or t.startswith(";"): continue
            if t.endswith(":") or t.startswith("."): s.L.append(t); continue
            s.add(Ins(t))
    def hist(s):
        return [x for x in s.L[-60:] if isinstance(x, Ins)]
    def add(s, c):
        d = 0; pad = 0
        for p in reversed(s.hist()):
            n = need(p, c)
            if n > d: pad = max(pad, n - d)
            d += p.states
            if d >= 20: break
        while pad > 0:
            k = min(pad, 16); s.L.append(Ins(f"s_nop {k-1}")); pad -= k; s.nops += 1
        s.L.append(c)
    def check_loop(s, label):
        i = s.L.index(label + ":")
        body = [x for x in s.L[i:] if isinstance(x, Ins)]
        seq = body + body[:25]
        for j in range(len(body), len(seq)):
            d = 0
            for p in reversed(seq[max(0, j - 25):j]):
                assert need(p, seq[j]) <= d, (s.name, label, p.text, seq[j].text)
                d += p.states
    def text(s):
        o = [f".globl {s.name}", ".p2align 8", f".type {s.name},@function", f"{s.name}:"]
        for x in s.L: o.append(x if isinstance(x, str) else "    " + x.text)
        return "\n".join(o) + "\n"
    def desc(s):
        acc = (s.nv + 3) // 4 * 4
        tot = acc + s.na if s.na else s.nv
        return f""".p2align 6
.amdhsa_kernel {s.name}
  .amdhsa_next_free_vgpr {tot}
  .amdhsa_next_free_sgpr {s.ns}
  .amdhsa_accum_offset {acc}
  .amdhsa_group_segment_fixed_size 0
  .amdhsa_kernarg_size 88
  .amdhsa_user_sgpr_count 2
  .amdhsa_user_sgpr_kernarg_segment_ptr 1
  .amdhsa_system_sgpr_workgroup_id_x 1
.end_amdhsa_kernel
"""
    def launch(s): return f"; @launch kernel={s.name} grid=({s.grid},1,1) block=({s.block},1,1) lds={s.lds}"
    def srd(s, d, b, nbytes, off=0):
        if off:
            s(f"s_add_u32 s{d}, s{b}, {off}\ns_addc_u32 s{d+1}, s{b+1}, 0")
        else:
            s(f"s_mov_b32 s{d}, s{b}\ns_mov_b32 s{d+1}, s{b+1}")
        s(f"s_mov_b32 s{d+2}, {nbytes}\ns_mov_b32 s{d+3}, 0x20000")
def v(a, n=1): return f"v{a}" if n == 1 else f"v[{a}:{a+n-1}]"
def a(x, n=1): return f"a{x}" if n == 1 else f"a[{x}:{x+n-1}]"
def sr(x, n=4): return f"s[{x}:{x+n-1}]"
```

```python
import sys
from gen import *
from k26 import *
def KE(i):
    k = K(f"e{i}_kernel", 256, 256, 0, 8); k("s_endpgm"); return k
ks = [K0(), K1()] + later() + [KE(i) for i in range(8)]
open(sys.argv[1], "w").write(build(ks))
```

```python
from lib import *
MODP=0x0; MODF=0x10000; MODB=0x14000; ST1=0x20000; FLG=0x30000; WQF=0x100000; QIMG=0x400000; KVIMG=0x900000
OF=0xE00000; X1F=0x1100000; YF=0x1400000; ST2=0x1700000; UVF=0x1780000; HF=0x1800000; PART=0x2A00000
HIMG=155648; TIMG=2432
W1F=0x3400000; W2F=0x3F00000; WOF=0x4500000; WSZ=5308416
LOG2E=1.4426950408889634
import struct
def f2u(x): return struct.unpack("<I", struct.pack("<f", x))[0]
for n in range(576): assert (n*1821)>>16 == n//36

def head(k, ngrid):
    if STAMP: k("s_memrealtime s[78:79]\ns_memtime s[80:81]\ns_mov_b32 s82, 0\ns_mov_b32 s84, 0\ns_mov_b32 s86, 0\ns_mov_b32 s88, 0")
    k(f"""s_load_dwordx16 s[8:23], s[0:1], 0
    s_load_dwordx2 s[24:25], s[0:1], 64
    s_load_dwordx2 s[28:29], s[0:1], 80
    s_cmp_ge_u32 s2, {ngrid}
    s_cbranch_scc1 END_{k.name}
    v_lshrrev_b32 v2, 6, v0
    v_and_b32 v1, 63, v0
    v_readfirstlane_b32 s6, v2""")
def tail(k):
    k(f"END_{k.name}:\ns_endpgm")
def code_prefetch(k, lab0, lab1, vt, slice_sreg=None):
    k(f"""s_getpc_b64 s[40:41]
    PC_{k.name}:
    s_add_u32 s40, s40, {lab0}-PC_{k.name}
    s_addc_u32 s41, s41, 0
    s_lshr_b32 s42, s2, 3
    s_lshl_b32 s42, s42, 12
    v_lshlrev_b32 {v(vt)}, 6, v1
    v_add_u32 {v(vt)}, s42, {v(vt)}
    v_mov_b32 {v(vt+1)}, {lab1}-{lab0}
    v_cmp_lt_u32 vcc, {v(vt)}, {v(vt+1)}
    v_mov_b32 {v(vt+3)}, s41
    v_add_co_u32 {v(vt+2)}, s[44:45], s40, {v(vt)}
    v_addc_co_u32 {v(vt+3)}, s[44:45], 0, {v(vt+3)}, s[44:45]
    s_and_saveexec_b64 s[42:43], vcc
    s_cbranch_execz PFX_{k.name}
    global_load_dword {v(vt)}, {v(vt+2,2)}, off
    PFX_{k.name}:
    s_mov_b64 exec, s[42:43]""")

def tr_lane(k, vG, vr, vc):
    k(f"""v_lshrrev_b32 {v(vG)}, 4, v1
    v_bfe_u32 {v(vr)}, v1, 2, 2
    v_and_b32 {v(vc)}, 3, v1""")

class VM:
    def __init__(s, k): s.k = k; s.n = 0; s.tag = {}
    def issue(s, text, tag=None):
        s.k(text); s.n += 1
        if tag is not None: s.tag[tag] = s.n
    def cnt(s, tag): return min(63, s.n - s.tag[tag])
    def wait(s, tag, extra=""): s.k(f"s_waitcnt vmcnt({s.cnt(tag)}){extra}")

def touch(k, vm, srd, soff, vidx, n, vd):
    for i in range(n):
        vm.issue(f"buffer_load_dword v{vd}, v{vidx}, {sr(srd)}, s{soff} offen")
        if i < n-1: k(f"s_add_u32 s{soff}, s{soff}, 8192")

def K0():
    RED = 4*9216+4*512
    k = K("k0_kernel", 256, 448, RED+512, 64)
    head(k, 256)
    k("""s_cmp_ge_u32 s6, 6
    s_cbranch_scc1 K0_F
    s_cmp_ge_u32 s6, 4
    s_cbranch_scc1 K0_P
    s_cmp_ge_u32 s2, 128
    s_cbranch_scc1 K0_L
    s_cmp_ge_u32 s2, 108
    s_cbranch_scc1 END_k0_kernel""")
    k(f"""s_mul_i32 s5, s6, {144*6912}
    s_lshl_b32 s7, s2, 6
    s_add_u32 s5, s5, s7             ; soffset
    s_mul_i32 s7, s6, 9216
    v_lshrrev_b32 v2, 2, v1
    v_mul_u32_u24 v2, 6912, v2
    v_and_b32 v3, 3, v1
    v_lshl_add_u32 v2, v3, 4, v2
    v_lshlrev_b32 v3, 1, v1
    s_mul_i32 s30, s6, 288
    s_waitcnt lgkmcnt(0)""")
    k.srd(32, 22, 576*6912); k.srd(36, 20, 1152)
    for j in range(3): k(f"buffer_load_ushort v{8+j}, v3, s[36:39], s30 offen offset:{128*j}")
    for s in range(9):
        k(f"""s_add_u32 m0, s7, {s*1024}
        s_add_u32 s31, s5, {s*16*6912}
        buffer_load_dwordx4 v2, s[32:35], s31 offen lds""")
    k.srd(44, 28, MODB-MODF+3456*2, MODF)
    tr_lane(k, 4, 5, 6)
    k(f"""v_lshrrev_b32 v7, 1, v4
    v_lshl_add_u32 v5, v7, 3, v5
    v_lshlrev_b32 v5, 6, v5
    v_and_b32 v4, 1, v4
    v_lshl_add_u32 v5, v4, 5, v5
    v_lshl_add_u32 v5, v6, 3, v5
    v_add_u32 v5, s7, v5
    s_lshl_b32 s30, s6, 9
    s_add_u32 s30, s30, {4*9216}
    v_add_u32 v4, s30, v3
    v_lshlrev_b32 v7, 4, v7
    v_add_u32 v7, s30, v7
    s_mov_b32 s31, {f2u(-LOG2E)}
    s_waitcnt vmcnt(9)""")
    for j in range(3): k(f"v_lshlrev_b32 v{8+j}, 16, v{8+j}\nv_mul_f32 v{12+j}, s31, v{8+j}")
    for j in range(3): k(f"v_exp_f32 v{12+j}, v{12+j}")
    for j in range(3): k(f"v_add_f32 v{12+j}, 1.0, v{12+j}")
    for j in range(3): k(f"v_rcp_f32 v{12+j}, v{12+j}")
    for j in range(3): k(f"v_mul_f32 v{12+j}, v{8+j}, v{12+j}")
    for j in range(3): k(f"v_cvt_pk_bf16_f32 v{12+j}, v{12+j}, v{12+j}")
    for j in range(3): k(f"ds_write_b16 v4, v{12+j} offset:{128*j}")
    k(f"""v_and_b32 v2, 31, v1
    v_lshlrev_b32 v6, 4, v2
    s_lshl_b32 s30, s6, 2
    v_add_u32 v4, s30, v6
    s_sub_u32 s3, s2, 18
    s_cmp_lt_u32 s3, 18
    s_cselect_b32 s4, 1.0, 0
    s_sub_u32 s3, s2, 72
    s_cmp_lt_u32 s3, 18
    s_cselect_b32 s4, 1.0, s4
    s_lshl_b32 s3, s2, 7
    s_lshl_b32 s5, s2, 6
    s_add_u32 s5, s5, {MODB-MODF}
    v_lshlrev_b32 v2, 2, v1""")
    for s in range(9):
        b = 16 + 8*(s % 2)
        k(f"""s_waitcnt vmcnt({8-s})
        ds_read_b128 {v(b,4)}, v7 offset:{32*s}
        ds_read_b64_tr_b16 {v(b+4,2)}, v5 offset:{1024*s}
        ds_read_b64_tr_b16 {v(b+6,2)}, v5 offset:{1024*s+256}
        s_waitcnt lgkmcnt(0)
        v_mfma_f32_32x32x16_bf16 v[32:47], {v(b,4)}, {v(b+4,4)}, {'0' if s==0 else 'v[32:47]'}""")
    k(f"""ds_write_b32 v4, v32 offset:{RED}
    s_waitcnt lgkmcnt(0)
    s_barrier
    s_cmp_lg_u32 s6, 0
    s_cbranch_scc1 END_k0_kernel
    ds_read_b128 v[8:11], v6 offset:{RED}
    s_mov_b32 exec_hi, 0
    s_waitcnt lgkmcnt(0)
    v_add_f32 v8, v8, v9
    v_add_f32 v10, v10, v11
    v_add_f32 v8, v8, v10
    v_cvt_pk_bf16_f32 v8, v8, v8
    v_lshlrev_b32 v8, 16, v8
    v_add_f32 v8, s4, v8
    v_cvt_pk_bf16_f32 v9, v8, v8
    v_lshlrev_b32 v8, 16, v9
    buffer_store_short v9, v3, s[44:47], s5 offen
    buffer_store_dword v8, v2, s[44:47], s3 offen
    s_endpgm""")
    k(f"""K0_L:
    s_and_b32 s3, s2, 7
    s_lshl_b32 s3, s3, 4
    s_bfe_u32 s4, s2, 0x40003
    s_add_u32 s3, s3, s4             ; blk16
    s_lshl_b32 s3, s3, 2
    s_add_u32 s3, s3, s6             ; blk4
    s_mul_i32 s4, s3, {4*1152}
    v_lshrrev_b32 v2, 4, v1
    v_and_b32 v3, 15, v1
    v_mul_u32_u24 v4, 1152, v2
    v_lshl_add_u32 v4, v3, 3, v4
    s_waitcnt lgkmcnt(0)""")
    k.srd(32, 8, 2048*1152); k.srd(36, 28, 2048*8, ST1)
    for i in range(9): k(f"buffer_load_dwordx2 {v(8+2*i,2)}, v4, s[32:35], s4 offen offset:{128*i}")
    k("s_mov_b32 s30, 0xffff0000")
    for i in range(18):
        if i % 2 == 0: k(f"s_waitcnt vmcnt({8-i//2})")
        k(f"v_lshlrev_b32 v{28+2*i}, 16, v{8+i}\nv_and_b32 v{29+2*i}, s30, v{8+i}")
        if i == 1: k(f"v_pk_add_f32 v[6:7], v[28:29], v[30:31]")
        elif i > 1: k(f"v_pk_add_f32 v[6:7], v[6:7], {v(28+2*i,2)}")
    def red16(r):
        for sh in (8, 4, 2, 1): k(f"v_add_f32_dpp v{r}, v{r}, v{r} row_ror:{sh} row_mask:0xf bank_mask:0xf")
    k("v_add_f32 v6, v6, v7"); red16(6)
    k(f"v_mul_f32 v6, {f2u(-1/576.)}, v6")
    for i in range(18):
        k(f"v_pk_add_f32 {v(28+2*i,2)}, {v(28+2*i,2)}, v[6:7] op_sel_hi:[1,0]")
    for i in range(18):
        if i == 0: k("v_pk_mul_f32 v[8:9], v[28:29], v[28:29]")
        else: k(f"v_pk_fma_f32 v[8:9], {v(28+2*i,2)}, {v(28+2*i,2)}, v[8:9]")
    k("v_add_f32 v8, v8, v9"); red16(8)
    k(f"""v_mov_b32 v9, {f2u(1e-5)}
    v_fmac_f32 v9, {f2u(1/576.)}, v8
    v_rsq_f32 v8, v9
    v_lshlrev_b32 v2, 3, v2
    v_mul_f32 v9, v6, v8
    s_lshl_b32 s3, s3, 5
    v_cmp_eq_u32 vcc, 0, v3
    s_and_saveexec_b64 s[30:31], vcc
    buffer_store_dwordx2 v[8:9], v2, s[36:39], s3 offen
    s_endpgm""")
    k(f"""K0_P:
    s_sub_u32 s30, s6, 4
    s_lshl_b32 s31, s30, 7
    s_add_u32 s31, s31, s2
    s_sub_u32 s31, s31, 128
    s_cmp_lt_u32 s2, 128
    s_cbranch_scc1 END_k0_kernel
    s_cmp_ge_u32 s31, 216
    s_cbranch_scc1 END_k0_kernel
    s_mul_i32 s30, s30, 9216
    s_mul_i32 s3, s31, 1821
    s_lshr_b32 s3, s3, 16            ; cgp
    s_mul_i32 s4, s3, 36
    s_sub_u32 s4, s31, s4            ; kstep
    s_mul_i32 s5, s4, {16*3456}
    s_mul_i32 s7, s3, 576
    s_add_u32 s5, s5, s7
    s_waitcnt lgkmcnt(0)""")
    k.srd(32, 10, 576*3456); k.srd(36, 28, 54*36*1024, WQF)
    for j in range(9):
        k(f"""v_add_u32 v2, {64*j}, v1
        v_mul_u32_u24 v3, 1821, v2
        v_lshrrev_b32 v3, 16, v3
        v_lshlrev_b32 v2, 4, v2
        v_mul_u32_u24 v3, {3456-576}, v3
        v_add_u32 v2, v2, v3
        s_add_u32 m0, s30, {1024*j}
        buffer_load_dwordx4 v2, s[32:35], s5 offen lds""")
    tr_lane(k, 4, 5, 6)
    k(f"""v_lshrrev_b32 v7, 1, v4
    v_lshl_add_u32 v5, v7, 3, v5
    v_mul_u32_u24 v5, 576, v5
    v_add_u32 v5, s30, v5
    v_and_b32 v4, 1, v4
    v_lshl_add_u32 v7, v4, 2, v6
    v_mul_u32_u24 v7, 72, v7
    v_add_u32 v7, v7, v5
    v_mul_u32_u24 v4, 40, v4
    v_add_u32 v5, v5, v4
    v_and_b32 v4, 1, v6
    v_lshrrev_b32 v6, 1, v6
    v_lshl_add_u32 v6, v4, 1, v6     ; pi(c)
    v_lshl_add_u32 v5, v6, 3, v5
    v_lshlrev_b32 v2, 4, v1
    s_lshr_b32 s5, s3, 1
    s_mul_i32 s5, s5, 18
    s_and_b32 s3, s3, 1
    s_add_u32 s7, s5, s3
    s_add_u32 s7, s7, 16
    s_lshl_b32 s3, s3, 3
    s_add_u32 s5, s5, s3
    s_mul_i32 s5, s5, 36
    s_add_u32 s5, s5, s4
    s_lshl_b32 s5, s5, 10
    s_mul_i32 s7, s7, 36
    s_add_u32 s7, s7, s4
    s_lshl_b32 s7, s7, 10
    s_waitcnt vmcnt(0)""")
    for p in range(8):
        k(f"ds_read_b64_tr_b16 {v(8+4*p,2)}, v5 offset:{72*p}\nds_read_b64_tr_b16 {v(10+4*p,2)}, v5 offset:{72*p+2304}")
        if p == 5: k("s_waitcnt lgkmcnt(4)")
    k(f"ds_read_b64_tr_b16 v[40:41], v7 offset:32\nds_read_b64_tr_b16 v[42:43], v7 offset:{32+2304}\ns_waitcnt lgkmcnt(0)")
    for p in range(8):
        k(f"buffer_store_dwordx4 {v(8+4*p,4)}, v2, s[36:39], s5 offen\ns_add_u32 s5, s5, {36*1024}")
    k("buffer_store_dwordx4 v[40:43], v2, s[36:39], s7 offen\ns_endpgm")
    k("K0_F:")
    code_prefetch(k, "k1_kernel", "CODE_END", 4)
    k(f"""s_and_b32 s3, s2, 7
    s_xor_b32 s3, s3, 1
    s_mul_i32 s3, s3, {256*1152}
    s_lshr_b32 s4, s2, 3
    s_mul_i32 s4, s4, {72*128}
    s_add_u32 s3, s3, s4
    v_lshlrev_b32 v8, 7, v1
    s_waitcnt lgkmcnt(0)""")
    k.srd(32, 8, 2048*1152)
    k("""buffer_load_dword v9, v8, s[32:35], s3 offen
    s_mov_b64 exec, 0xff
    s_add_u32 s3, s3, 8192
    buffer_load_dword v10, v8, s[32:35], s3 offen""")
    tail(k)
    return k

def bf16_round(k, regs, tmp):
    for i in range(0, len(regs), 2):
        k(f"v_cvt_pk_bf16_f32 v{tmp+i//2}, v{regs[i]}, v{regs[i+1]}")
    for i in range(0, len(regs), 2):
        k(f"v_lshlrev_b32 v{regs[i]}, 16, v{tmp+i//2}\nv_and_b32 v{regs[i+1]}, 0xffff0000, v{tmp+i//2}")

def K1():
    k = K("k1_kernel", 256, 512, 72*1040, 256)
    head(k, 256)
    X=28; W=64; ACC=208; PA=[8, 240]; PR=224
    SC = " sc1" if int(os.environ.get("K1SC", 1)) else ""
    W0 = int(os.environ.get("K1W0", 0)); WC = [int(c) for c in os.environ.get("K1WC", "000000006")]; ROT = int(os.environ.get("K1ROT", 1))
    k(f"""s_bfe_u32 s4, s2, 0x20001
    s_lshl_b32 s4, s4, 3
    s_lshr_b32 s5, s2, 5
    s_add_u32 s4, s4, s5             ; tb
    s_lshl_b32 s5, s4, 3
    s_add_u32 s5, s5, s6
    s_lshl_b32 s7, s5, 6
    s_add_u32 s7, s7, {ST1-MODB}
    s_mul_i32 s5, s5, {8*1152}
    v_lshrrev_b32 v3, 3, v1          ; t
    v_and_b32 v4, 7, v1              ; cg
    v_lshlrev_b32 v2, 4, v4
    v_mul_u32_u24 v5, 1152, v3
    v_add_u32 v5, v2, v5
    v_lshlrev_b32 v6, 3, v3
    v_lshlrev_b32 v7, 4, v1
    s_add_u32 s31, s5, {4*1152}
    s_waitcnt lgkmcnt(0)""")
    k.srd(32, 28, ST1-MODB+2048*8, MODB); k.srd(44, 8, 2048*1152)
    vm = VM(k)
    k(f"s_buffer_load_dwordx16 s[8:23], s[32:35], s7")
    vm.issue(f"buffer_load_dwordx4 {v(PR,4)}, v7, s[32:35], 0 offen")
    vm.issue(f"buffer_load_dwordx4 {v(PR+4,4)}, v7, s[32:35], 0 offen offset:1152", "p0")
    for i in range(8): vm.issue(f"buffer_load_dwordx4 {v(X+4*i,4)}, v7, s[44:47], {'s5' if i < 4 else 's31'} offen offset:{1152*(i%4)}", ("x", i))
    vm.issue(f"buffer_load_dwordx4 {v(PR+8,4)}, v2, s[32:35], 0 offen offset:1024")
    vm.issue(f"buffer_load_dwordx4 {v(PR+12,4)}, v2, s[32:35], 0 offen offset:{1024+1152}")
    vm.issue("buffer_load_dwordx2 v[24:25], v6, s[32:35], s7 offen")
    vm.issue(f"buffer_load_dwordx4 {v(X+32,4)}, v5, s[44:47], s5 offen offset:1024", ("x", 8))
    k(f"""s_and_b32 s3, s2, 1
    s_lshl_b32 s3, s3, 2
    s_bfe_u32 s30, s2, 0x20003
    s_add_u32 s3, s3, s30            ; fb
    s_mul_i32 s3, s3, 7
    s_add_u32 s3, s3, s6
    s_cmp_eq_u32 s6, 7
    s_cselect_b32 s3, 60, s3
    s_mul_i32 s30, s3, {36*1024}""")
    k.srd(48, 28, 54*36*1024, WQF); k.srd(52, 28, KVIMG-QIMG+32*HIMG, QIMG)
    k(f"s_and_b32 s5, s4, {3 if ROT else 0}")
    for q in range(4):
        k(f"""s_add_u32 s7, s5, {q}
        s_and_b32 s7, s7, 3
        s_mul_i32 s{56+q}, s7, 9216
        s_add_u32 s{56+q}, s{56+q}, s30
        s_mul_i32 s{60+q}, s7, {9*2080}""")
    wn = [0]
    def wld(n):
        for _ in range(n):
            s = wn[0]
            if s >= 36: return
            wn[0] += 1; q, r = divmod(s, 9)
            if r in (4, 8): k(f"s_add_u32 s{56+q}, s{56+q}, 4096")
            vm.issue(f"buffer_load_dwordx4 {v(W+4*s,4)}, v7, s[48:51], s{56+q} offen offset:{1024*(r%4)}", ("w", s))
    wld(W0)
    k(f"""s_lshl_b32 s31, s6, 7
    v_mul_u32_u24 v6, 1040, v1
    v_add_u32 v6, s31, v6
    v_mul_u32_u24 v5, 1040, v4
    v_lshl_add_u32 v5, v3, 4, v5
    s_add_u32 s31, s31, {64*1040}
    v_add_u32 v5, s31, v5
    s_mov_b32 s31, 0xffff0000""")
    def unp(d, r, n):
        for j in range(n): k(f"v_lshlrev_b32 v{d+2*j}, 16, v{r+j}\nv_and_b32 v{d+2*j+1}, s31, v{r+j}")
    vm.wait("p0"); k.stamp(1)
    unp(PA[0], PR, 8)
    T = ACC
    for i in range(9):
        vm.wait(("x", i), " lgkmcnt(0)" if i == 0 else "")
        b = PA[i // 8]
        if i == 8: unp(PA[1], PR+8, 8)
        unp(T, X+4*i, 4)
        so = f"s[{8+2*i}:{9+2*i}]" if i < 8 else "v[24:25]"
        for j in range(4): k(f"v_pk_fma_f32 {v(T+2*j,2)}, {v(T+2*j,2)}, {so}, {so} op_sel:[0,0,1] op_sel_hi:[1,0,1]")
        for j in range(4): k(f"v_pk_fma_f32 {v(T+2*j,2)}, {v(T+2*j,2)}, {v(b+8+2*j,2)}, {v(b+2*j,2)}")
        for j in range(4): k(f"v_cvt_pk_bf16_f32 v{X+4*i+j}, v{T+2*j}, v{T+2*j+1}")
        k(f"ds_write_b128 v6, {v(X+4*i,4)} offset:{16*i}" if i < 8 else f"ds_write_b128 v5, {v(X+4*i,4)}")
        wld(WC[i])
    k(f"""v_lshrrev_b32 v3, 5, v1          ; hf
    v_and_b32 v4, 31, v1             ; tok
    v_mul_u32_u24 v5, 1040, v3
    v_lshl_add_u32 v5, v4, 4, v5
    v_add_u32 v8, s60, v5
    v_add_u32 v9, s61, v5
    v_add_u32 v10, s62, v5
    v_add_u32 v11, s63, v5
    s_waitcnt lgkmcnt(0)
    s_barrier
    s_cmp_ge_u32 s3, 54
    s_cbranch_scc1 END_k1_kernel""")
    def hrd(s):
        b = X + 8*(s % 4)
        for tt in range(2): k(f"ds_read_b128 {v(b+4*tt,4)}, v{8+s//9} offset:{2080*(s%9)+512*tt}")
    k.stamp(2)
    for s in range(3): hrd(s)
    for s in range(36):
        if s+3 < 36: hrd(s+3)
        vm.wait(("w", s), f" lgkmcnt({2*min(3,35-s)})")
        b = X + 8*(s % 4)
        for tt in range(2):
            A = v(ACC+16*tt,16)
            k(f"v_mfma_f32_32x32x16_bf16 {A}, {v(W+4*s,4)}, {v(b+4*tt,4)}, {'0' if s==0 else A}")
            if tt == 0: wld(1)
    k.stamp(3)
    k(f"""s_cmp_lt_u32 s3, 18
    s_cselect_b32 s31, {f2u(18**-0.5*LOG2E)}, 1.0
    s_cselect_b32 s30, 0, {KVIMG-QIMG}
    s_mul_i32 s5, s4, {2*TIMG}
    s_add_u32 s30, s30, s5
    s_mul_i32 s5, s3, {1821*2}
    s_lshr_b32 s5, s5, 16            ; section
    s_mul_i32 s7, s5, 18
    s_sub_u32 s7, s3, s7             ; idx
    v_lshrrev_b32 v8, 4, v4
    v_and_b32 v9, 15, v4
    v_mul_u32_u24 v8, 640, v8
    v_add_u32 v8, 1024, v8
    s_cmp_ge_u32 s7, 16
    s_cbranch_scc1 K1_HI
    s_mul_i32 s7, s7, {2*HIMG}
    s_add_u32 s30, s30, s7
    s_cmp_eq_u32 s5, 2
    s_cselect_b64 vcc, -1, 0
    v_lshl_add_u32 v8, v9, 5, v8
    v_lshl_add_u32 v8, v3, 4, v8
    v_lshlrev_b32 v9, 4, v1
    v_cndmask_b32 v8, v9, v8, vcc
    s_add_u32 s7, s30, {HIMG}""")
    for n in range(54): assert (n*3642)>>16 == n//18
    for r in range(32): k(f"v_mul_f32 v{ACC+r}, s31, v{ACC+r}")
    for q in range(4):
        for j in range(4): k(f"v_cvt_pk_bf16_f32 v{X+4*q+j}, v{ACC+8*q+2*j}, v{ACC+8*q+2*j+1}")
        k(f"buffer_store_dwordx4 {v(X+4*q,4)}, v8, s[52:55], {'s30' if q%2==0 else 's7'} offen offset:{TIMG*(q//2)}{SC}")
    k("s_endpgm")
    k(f"""K1_HI:
    s_sub_u32 s7, s7, 16
    s_mul_i32 s7, s7, {16*HIMG}
    s_add_u32 s30, s30, s7
    s_mov_b32 s7, {2*HIMG}
    v_mul_lo_u32 v10, v3, s7
    v_lshl_add_u32 v8, v9, 3, v8
    v_add_u32 v8, v8, v10
    v_lshl_add_u32 v9, v4, 2, v10""")
    for r in range(32): k(f"v_mul_f32 v{ACC+r}, s31, v{ACC+r}")
    for q in range(16):
        k(f"v_cvt_pk_bf16_f32 v{X+2*q}, v{ACC+2*q}, v{ACC+2*q+1}\nv_mov_b32 v{X+2*q+1}, 0x3f803f80")
    k("s_cmp_eq_u32 s5, 2\ns_cbranch_scc1 K1_HIV")
    def histores(isv):
        for j in range(4):
            for par in range(2):
                k(f"s_add_u32 s7, s30, {(4*j+par)*HIMG + (0 if isv else 2304)}")
                for tt in range(2):
                    r = X + 2*(8*tt+2*j+par)
                    if isv: k(f"buffer_store_dwordx2 {v(r,2)}, v8, s[52:55], s7 offen offset:{512+TIMG*tt}")
                    else: k(f"buffer_store_dword v{r}, v9, s[52:55], s7 offen offset:{TIMG*tt}")
        k("s_endpgm")
    histores(False)
    k("K1_HIV:"); histores(True)
    tail(k)
    return k
```

```python
from lib import *
from k01 import *

def pi_c(k, vc, vt):
    k(f"v_and_b32 {v(vt)}, 1, {v(vc)}\nv_lshrrev_b32 {v(vc)}, 1, {v(vc)}\nv_lshl_add_u32 {v(vc)}, {v(vt)}, 1, {v(vc)}")

def K2():
    SD = int(os.environ.get("K2SD", 0)); PR = int(os.environ.get("K2PR", 3)); TH = [int(x) for x in os.environ.get("K2TH", "4,6,7").split(",")]
    FLAG = 163840-16
    k = K("k2_kernel", 256, 576, 163840, 168)
    head(k, 256)
    S=[16,32]; O=48; P=64; QL=72; QH=76; KL=80; KH=78; V0=84; V1=88
    AKL=8; AKH=9; AV=[10,11]
    k(f"""s_and_b32 s3, s2, 7
    s_lshl_b32 s3, s3, 2
    s_bfe_u32 s4, s2, 0x20003
    s_add_u32 s3, s3, s4             ; head
    s_lshr_b32 s4, s2, 5
    s_lshl_b32 s4, s4, 3
    s_add_u32 s4, s4, s6             ; q tile
    s_mul_i32 s5, s3, {HIMG}
    s_mul_i32 s7, s4, {TIMG}
    s_add_u32 s7, s7, s5
    s_lshl_b32 s30, s6, 10
    s_add_u32 s31, s5, s30
    v_lshlrev_b32 v2, 4, v1
    v_and_b32 v3, 31, v1
    v_lshlrev_b32 v3, 2, v3
    s_cmp_eq_u32 s6, 8
    s_waitcnt lgkmcnt(0)""")
    k.srd(36, 28, 32*HIMG, 0)
    k(f"""s_cbranch_scc1 K2_HELP
    s_add_u32 s36, s28, {KVIMG}
    s_addc_u32 s37, s29, 0""")
    k.srd(32, 28, 32*HIMG, QIMG); k.srd(44, 28, 64*36*1024, OF)
    k(f"""buffer_load_dwordx4 {v(QL,4)}, v2, s[32:35], s7 offen
    buffer_load_dword v{QH}, v3, s[32:35], s7 offen offset:2304
    buffer_load_dwordx4 {v(KL,4)}, v2, s[36:39], s5 offen
    buffer_load_dword v{KH}, v3, s[36:39], s5 offen offset:2304""")
    for j in range(3):
        k(f"s_add_u32 m0, s30, {8192*j}\ns_add_u32 s7, s31, {8192*j}\nbuffer_load_dwordx4 v2, s[36:39], s7 offen lds")
    tr_lane(k, 4, 5, 6); pi_c(k, 6, 7)
    k(f"""v_lshrrev_b32 v7, 1, v4
    v_lshl_add_u32 v5, v7, 2, v5     ; 4hf+r
    v_lshlrev_b32 v12, 5, v5
    v_lshl_add_u32 v12, v6, 3, v12   ; lo
    v_lshlrev_b32 v13, 3, v5
    v_add_u32 v13, 512, v13          ; hi
    v_and_b32 v4, 1, v4
    v_cmp_eq_u32 vcc, 1, v4
    v_add_u32 v14, 256, v12
    v_add_u32 v15, 64, v13
    v_cndmask_b32 v12, v12, v13, vcc
    v_cndmask_b32 v13, v14, v15, vcc
    v_cmp_gt_u32 s[48:49], 32, v1
    v_mov_b32 v{KH+1}, 0x3f803f80
    s_mov_b32 s40, 0
    s_mov_b32 s41, 1
    s_lshr_b32 s43, s6, 2
    v_mov_b32 v{QH+1}, 0
    v_mov_b32 v14, 0xff800000
    s_waitcnt vmcnt(3)
    v_cndmask_b32 v{QH}, 0, v{QH}, s[48:49]
    s_branch K2_MAX1
    K2_RESTART:
    v_mov_b32 v{QH+1}, 0
    v_mov_b32 v14, 0xff800000
    v_mov_b32 v{AKL}, v2
    v_mov_b32 v{AKH}, v3
    K2_MAX:
    ds_read_b32 v{KH}, v{AKH} offset:2304
    ds_read_b128 {v(KL,4)}, v{AKL}
    v_add_u32 v{AKH}, {TIMG}, v{AKH}
    v_add_u32 v{AKL}, {TIMG}, v{AKL}
    s_waitcnt lgkmcnt(0)
    K2_MAX1:
    s_nop 1
    v_mfma_f32_32x32x8_bf16 {v(S[0],16)}, {v(KH,2)}, {v(QH,2)}, 0
    v_mfma_f32_32x32x16_bf16 {v(S[0],16)}, {v(KL,4)}, {v(QL,4)}, {v(S[0],16)}
    s_sub_u32 s41, s41, 1""")
    for j in range(8): k(f"v_max3_f32 v14, v{S[0]+2*j}, v{S[0]+2*j+1}, v14")
    k(f"""s_cmp_lg_u32 s41, 0
    s_cbranch_scc1 K2_MAX""")
    k.check_loop("K2_MAX"); k.stamp(1)
    k(f"""v_mov_b32 v15, v14
    v_mov_b32 v{AKL}, v2
    v_mov_b32 v{AKH}, v3
    v_permlane32_swap_b32 v14, v15
    v_max_f32 v14, v14, v15
    v_cvt_pk_bf16_f32 v15, -v14, -v14
    v_mov_b32 v{AV[0]}, v12
    v_lshlrev_b32 v4, 16, v15
    v_add_f32 v4, v4, v14
    v_cvt_pk_bf16_f32 v4, -v14, -v4
    v_mov_b32 v{AV[1]}, v13
    v_cndmask_b32 v{QH+1}, 0, v4, s[48:49]""")
    for r in range(16): k(f"v_mov_b32 v{O+r}, 0")
    for r in range(4): k(f"v_mov_b32 v{P+4+r}, 0\nv_mov_b32 v{V1+r}, 0")
    k(f"""s_cmp_lg_u32 s40, 0
    s_cbranch_scc1 K2_NB
    s_waitcnt vmcnt(0)
    s_barrier
    K2_NB:
    ds_read_b32 v{KH}, v{AKH} offset:2304
    ds_read_b128 {v(KL,4)}, v{AKL}
    ds_read_b64_tr_b16 {v(V0,2)}, v{AV[0]} offset:1024
    ds_read_b64_tr_b16 {v(V0+2,2)}, v{AV[1]} offset:1024
    s_waitcnt lgkmcnt(2)
    v_mfma_f32_32x32x8_bf16 {v(S[0],16)}, {v(KH,2)}, {v(QH,2)}, 0
    v_mfma_f32_32x32x16_bf16 {v(S[0],16)}, {v(KL,4)}, {v(QL,4)}, {v(S[0],16)}
    ds_read_b32 v{KH}, v{AKH} offset:{2304+TIMG}
    ds_read_b128 {v(KL,4)}, v{AKL} offset:{TIMG}
    s_mov_b32 s42, 8
    s_nop 7
    s_waitcnt lgkmcnt(0)""")
    k.stamp(2)
    if PR == 2: k("s_cmp_eq_u32 s43, 0\ns_cbranch_scc1 K2_LOOP\ns_setprio 1")
    if PR == 3: k("s_setprio 3")
    k(f"""s_mov_b32 s43, {2+sum(1<<x for x in TH)}
    K2_LOOP:
    s_bitcmp1_b32 s43, s40
    s_cbranch_scc1 K2_SYNC
    K2_BACK:""")
    for t in range(8):
        c = S[t % 2]; n = S[(t+1) % 2]
        if SD:
            e = lambda i: k(f"v_exp_f32 v{P+i//2 if i%2 else c+i}, v{c+i}")
            cv = lambda i: k(f"v_mov_b32_sdwa v{P+i}, v{c+2*i} dst_sel:WORD_0 dst_unused:UNUSED_PRESERVE src0_sel:WORD_1")
        else:
            e = lambda i: k(f"v_exp_f32 v{c+i}, v{c+i}")
            cv = lambda i: k(f"v_cvt_pk_bf16_f32 v{P+i}, v{c+2*i}, v{c+2*i+1}")
        if PR == 1 and t % 4 == 0:
            k(f"""s_xor_b32 s43, s43, 1
            s_setprio 0
            s_cbranch_scc0 K2_P{t}
            s_setprio 1
            K2_P{t}:""")
        k(f"""s_waitcnt lgkmcnt(5)
        v_mfma_f32_32x32x8_bf16 {v(n,16)}, {v(KH,2)}, {v(QH,2)}, 0
        ds_read_b32 v{KH}, v{AKH} offset:{2304+TIMG*(t+2)}""")
        e(0); e(1); e(2); e(3)
        k(f"""s_waitcnt lgkmcnt(4)
        v_mfma_f32_32x32x16_bf16 {v(O,16)}, {v(V1,4)}, {v(P+4,4)}, {v(O,16)}
        ds_read_b64_tr_b16 {v(V1,2)}, v{AV[0]} offset:{1024+640+TIMG*t}
        ds_read_b64_tr_b16 {v(V1+2,2)}, v{AV[1]} offset:{1024+640+TIMG*t}""")
        cv(0); e(4); cv(1); e(5); e(6); e(7)
        k(f"""s_waitcnt lgkmcnt(5)
        v_mfma_f32_32x32x16_bf16 {v(n,16)}, {v(KL,4)}, {v(QL,4)}, {v(n,16)}
        ds_read_b128 {v(KL,4)}, v{AKL} offset:{TIMG*(t+2)}""")
        cv(2); e(8); cv(3); e(9); e(10); e(11)
        k(f"""s_waitcnt lgkmcnt(4)
        v_mfma_f32_32x32x16_bf16 {v(O,16)}, {v(V0,4)}, {v(P,4)}, {v(O,16)}
        ds_read_b64_tr_b16 {v(V0,2)}, v{AV[0]} offset:{1024+TIMG*(t+1)}
        ds_read_b64_tr_b16 {v(V0+2,2)}, v{AV[1]} offset:{1024+TIMG*(t+1)}""")
        cv(4); e(12); cv(5); e(13); e(14); e(15)
        if t == 7:
            for r in (AKL, AKH, AV[0], AV[1]): k(f"v_add_u32 v{r}, {8*TIMG}, v{r}")
            k("s_sub_u32 s42, s42, 1\ns_add_u32 s40, s40, 1\ns_cmp_lg_u32 s42, 0")
        cv(6); cv(7)
    k("s_cbranch_scc1 K2_LOOP")
    k.check_loop("K2_LOOP"); k.stamp(4)
    k(f"""s_waitcnt lgkmcnt(0)
    v_mfma_f32_32x32x16_bf16 {v(O,16)}, {v(V1,4)}, {v(P+4,4)}, {v(O,16)}
    s_mul_i32 s4, s4, 36
    s_add_u32 s5, s4, s3
    s_lshl_b32 s5, s5, 10
    s_lshr_b32 s7, s3, 2
    s_lshl_b32 s7, s7, 9
    s_and_b32 s31, s3, 3
    s_lshl_b32 s31, s31, 2
    s_add_u32 s7, s7, s31
    s_add_u32 s31, s4, 32
    s_lshl_b32 s31, s31, 10
    s_add_u32 s7, s7, s31
    v_cmp_gt_f32 vcc, {f2u(2.0**60)}, v{O+10}
    v_rcp_f32 v4, v{O+10}
    s_cmp_eq_u64 vcc, -1
    s_cbranch_scc1 K2_OUT
    s_cmp_ge_u32 s40, 100
    s_cbranch_scc1 K2_OUT
    s_mov_b32 s40, 100
    s_mov_b32 s41, 64
    s_lshr_b32 s4, s2, 5
    s_lshl_b32 s4, s4, 3
    s_add_u32 s4, s4, s6
    s_branch K2_RESTART
    K2_OUT:""")
    for r in range(10): k(f"v_mul_f32 v{O+r}, v4, v{O+r}")
    for r in range(5): k(f"v_cvt_pk_bf16_f32 v{P+r}, v{O+2*r}, v{O+2*r+1}")
    k(f"""buffer_store_dwordx4 {v(P,4)}, v2, s[44:47], s5 offen
    s_mov_b32 exec_hi, 0
    buffer_store_dword v{P+4}, v2, s[44:47], s7 offen
    s_endpgm
    K2_SYNC:
    s_cmp_eq_u32 s40, 1
    s_cbranch_scc1 K2_POLL
    s_setprio 2
    s_cmp_eq_u32 s40, {TH[0]}
    s_cbranch_scc1 K2_BACK
    s_setprio 1
    s_cmp_eq_u32 s40, {TH[1]}
    s_cbranch_scc1 K2_BACK
    s_setprio 0
    s_branch K2_BACK
    K2_POLL:
    v_mov_b32 v4, {FLAG}
    ds_read_b32 v4, v4
    s_waitcnt lgkmcnt(0)
    v_readfirstlane_b32 s41, v4
    s_cmp_eq_u32 s41, 1
    s_cbranch_scc0 K2_POLL""")
    k.stamp(3)
    k("s_branch K2_BACK")
    LH = HIMG
    HP = os.environ.get("K2HP", "03"); NB = int(os.environ.get("K2NB", 47))
    k(f"""K2_HELP:
    s_setprio {HP[0]}
    s_add_u32 s36, s28, {KVIMG}
    s_addc_u32 s37, s29, 0
    s_add_u32 s5, s5, 24576
    v_mov_b32 v8, {FLAG}
    v_mov_b32 v9, 0
    ds_write_b32 v8, v9
    v_mov_b32 v9, 1""")
    for j in range(128):
        if j % 4 == 0: k(f"s_mov_b32 m0, {24576+1024*j}" + ("\ns_add_u32 s5, s5, 4096" if j else "\ns_nop 0"))
        k(f"buffer_load_dwordx4 v2, s[36:39], s5 offen offset:{1024*(j%4)} lds")
        if j == NB: k(f"s_waitcnt lgkmcnt(0)\ns_barrier\ns_setprio {HP[1]}")
    k.srd(32, 16, 576*9216); k.srd(40, 18, 4608*1152); k.srd(44, 12, 576*1152); k.srd(48, 8, 2048*1152)
    k.srd(52, 28, 3456*4, MODF); k.srd(56, 28, W2F-W1F+WSZ, W1F)
    for n in range(32): assert (n*57)>>9 == n//9
    tr_lane(k, 4, 5, 6)
    k(f"""s_and_b32 s3, s2, 7              ; xcd
    s_lshr_b32 s4, s2, 3             ; j
    s_mul_i32 s61, s4, {162*128}
    s_mul_i32 s62, s3, {256*1152}
    s_mul_i32 s63, s4, {72*128}
    s_add_u32 s62, s62, s63          ; x soff
    s_and_b32 s63, s4, 1
    s_lshl_b32 s63, s63, 13
    s_mul_i32 s30, s4, 57
    s_lshr_b32 s30, s30, 9           ; sg
    s_mul_i32 s31, s30, 9
    s_sub_u32 s31, s4, s31           ; pg
    s_lshr_b32 s5, s3, 1
    s_mul_i32 s5, s5, 9
    s_add_u32 s5, s5, s31
    s_lshl_b32 s64, s5, 8
    s_mul_i32 s7, s30, {192*9216}
    s_add_u32 s64, s64, s7           ; W1 src
    s_mul_i32 s65, s5, {4*36*1024}
    s_mul_i32 s7, s30, {12*1024}
    s_add_u32 s65, s65, s7
    s_and_b32 s7, s3, 1
    s_mul_i32 s7, s7, {WSZ}
    s_add_u32 s65, s65, s7           ; W1F dst
    s_mul_i32 s5, s3, 18
    s_add_u32 s5, s5, s4
    s_sub_u32 s5, s5, 14
    s_mul_i32 s66, s5, {32*1152}     ; W2 src
    s_lshr_b32 s7, s3, 1             ; sp
    s_mul_i32 s7, s7, {3*36*9216}
    s_mul_i32 s67, s5, 9216
    s_add_u32 s67, s67, s7
    s_add_u32 s67, s67, {W2F-W1F}    ; W2F dst
    v_lshrrev_b32 v7, 3, v1
    v_and_b32 v10, 7, v1
    v_lshlrev_b32 v10, 4, v10
    v_mad_u32_u24 v11, v7, 36, 0
    v_lshl_add_u32 v12, v11, 8, v10  ; W1 voffset
    v_lshl_add_u32 v13, v11, 5, v10  ; W2 voffset
    v_add_u32 v10, {LH}, v10
    v_mov_b32 v11, 192
    v_mad_u32_u24 v14, v7, v11, v10
    v_mov_b32 v16, 160
    v_mad_u32_u24 v15, v7, v16, v10
    v_lshrrev_b32 v7, 1, v4
    v_and_b32 v4, 1, v4
    v_lshlrev_b32 v6, 3, v6
    v_add_u32 v6, {LH}, v6
    v_lshl_add_u32 v10, v7, 4, v5
    v_lshl_add_u32 v10, v4, 2, v10
    v_mad_u32_u24 v17, v10, v16, v6
    v_lshl_add_u32 v10, v7, 3, v5
    v_lshl_add_u32 v6, v4, 5, v6
    v_mad_u32_u24 v16, v10, v11, v6
    v_lshlrev_b32 v4, 7, v1
    s_waitcnt vmcnt(0)
    ds_write_b32 v8, v9""")
    k.stamp(1)
    def job(ng, srd, vo, sb, src, pitch, wa, ra, troff, db, dst):
        vm = VM(k); D = 9
        def ld(g):
            for i in range(4):
                k(f"s_add_u32 s30, s{sb}, {src(g, i)}")
                vm.issue(f"buffer_load_dwordx4 {v(24+16*(g%D)+4*i,4)}, v{vo}, {sr(srd)}, s30 offen nt", g)
        for g in range(min(D, ng)): ld(g)
        for g in range(ng):
            b = 24+16*(g%D)
            vm.wait(g)
            for i in range(4): k(f"ds_write_b128 v{wa}, {v(b+4*i,4)} offset:{8*pitch*i}")
            k("s_waitcnt lgkmcnt(0)")
            for q in range(4):
                for h in range(2): k(f"ds_read_b64_tr_b16 {v(b+4*q+2*h,2)}, v{ra} offset:{troff(q, h)}")
            for q in range(4):
                k(f"s_add_u32 s30, s{db}, {dst(g, q)}\ns_waitcnt lgkmcnt({6-2*q})")
                vm.issue(f"buffer_store_dwordx4 {v(b+4*q,4)}, v2, s[56:59], s30 offen sc1")
            if g+D < ng: ld(g+D)
    k("s_cmp_ge_u32 s4, 27\ns_cbranch_scc1 K2_H2")
    job(12, 32, 12, 64, lambda g, i: (g//2*32+8*i)*9216 + 128*(g%2), 192, 14, 16, lambda q, h: (16*(q//2)+4*h)*192 + 64*(q%2),
        65, lambda g, q: ((2*(g%2)+q%2)*36 + 2*(g//2)+q//2)*1024)
    k("K2_H2:\ns_cmp_lt_u32 s4, 14\ns_cbranch_scc1 K2_H3")
    job(9, 40, 13, 66, lambda g, i: 8*i*1152 + 128*g, 160, 15, 17, lambda q, h: 8*h*160 + 32*q,
        67, lambda g, q: ((4*g+q)//9*36*9 + (4*g+q)%9)*1024)
    k("K2_H3:")
    k.stamp(2)
    vm = VM(k)
    touch(k, vm, 44, 61, 4, 3, 23); touch(k, vm, 48, 62, 4, 2, 23); touch(k, vm, 52, 63, 4, 1, 23)
    k(f"""s_cmp_ge_u32 s4, 27
    s_cbranch_scc1 K2_H4
    s_waitcnt vmcnt(6)
    s_mov_b32 exec_hi, 0xffff""")
    for t in range(4):
        for h in range(2): k(f"s_add_u32 s30, s65, {t*36*1024+h*6144}\nbuffer_load_dword v23, v4, s[56:59], s30 offen")
    k("s_mov_b32 exec_hi, -1\nK2_H4:")
    code_prefetch(k, "k3_kernel", "CODE_END", 24)
    tail(k)
    return k

def KU():
    k = K("ku_kernel", 144, 64, 36864, 192)
    head(k, 144)
    k(f"""s_lshl_b32 s5, s2, 6
    v_lshrrev_b32 v2, 2, v1
    v_mul_u32_u24 v2, 9216, v2
    v_and_b32 v3, 3, v1
    v_lshl_add_u32 v2, v3, 4, v2
    v_and_b32 v3, 31, v1
    v_lshrrev_b32 v8, 5, v1
    v_lshlrev_b32 v8, 4, v8
    v_mov_b32 v9, 0x100000
    v_mov_b32 v10, {2304*2}
    v_cmp_eq_u32 vcc, 0, v3
    v_cndmask_b32 v9, v9, v10, vcc
    v_mov_b32 v10, {1728*2}
    v_cmp_eq_u32 vcc, 4, v3
    v_cndmask_b32 v9, v9, v10, vcc
    v_add_u32 v8, v8, v9
    s_waitcnt lgkmcnt(0)""")
    k.srd(32, 16, 576*9216); k.srd(36, 28, 3456*2, MODB); k.srd(44, 28, 144*512, UVF)
    vm = VM(k)
    for s in range(36):
        k(f"s_mov_b32 m0, {s*1024}")
        vm.issue(f"buffer_load_dwordx4 {v(48+4*s,4)}, v8, s[36:39], 0 offen offset:{32*s}")
        vm.issue(f"buffer_load_dwordx4 v2, s[32:35], s5 offen lds", s)
        k(f"s_add_u32 s5, s5, {16*9216}")
    tr_lane(k, 4, 5, 6)
    k(f"""v_lshrrev_b32 v7, 1, v4
    v_lshl_add_u32 v5, v7, 3, v5
    v_lshlrev_b32 v5, 6, v5
    v_and_b32 v4, 1, v4
    v_lshl_add_u32 v5, v4, 5, v5
    v_lshl_add_u32 v5, v6, 3, v5""")
    for s in range(36):
        b = 16 + 4*(s % 2)
        vm.wait(s)
        k(f"""ds_read_b64_tr_b16 {v(b,2)}, v5 offset:{1024*s}
        ds_read_b64_tr_b16 {v(b+2,2)}, v5 offset:{1024*s+256}
        s_waitcnt lgkmcnt(0)
        v_mfma_f32_32x32x16_bf16 v[32:47], {v(48+4*s,4)}, {v(b,4)}, {'0' if s==0 else 'v[32:47]'}""")
    k(f"""s_lshl_b32 s5, s2, 9
    v_lshlrev_b32 v2, 3, v1
    v_cvt_pk_bf16_f32 v9, v32, 0
    v_lshlrev_b32 v8, 16, v9
    v_sub_f32 v8, v32, v8
    v_cvt_pk_bf16_f32 v8, v32, v8
    buffer_store_dwordx2 v[8:9], v2, s[44:47], s5 offen""")
    tail(k)
    return k

def K3():
    XL = 110592; EX = XL + 12288
    k = K("k3_kernel", 256, 256, EX+24576, 224)
    head(k, 256)
    k("s_cmp_ge_u32 s2, 192\ns_cbranch_scc1 K3_U")
    OFR=16; ACC=88; PRM=136; WB=184
    k(f"""s_and_b32 s3, s2, 7
    s_lshl_b32 s3, s3, 2
    s_bfe_u32 s4, s2, 0x20003
    s_add_u32 s3, s3, s4             ; rb
    s_lshr_b32 s4, s2, 5             ; cbk
    s_and_b32 s5, s6, 1              ; tt
    s_lshr_b32 s7, s6, 1             ; kh
    s_lshl_b32 s50, s3, 1
    s_add_u32 s50, s50, s5
    s_mul_i32 s51, s50, {36*1024}
    s_lshl_b32 s30, s7, 14
    s_add_u32 s52, s51, s30
    s_lshl_b32 s30, s7, 11
    s_add_u32 s53, s51, s30
    s_add_u32 s53, s53, {32*1024}
    s_mul_i32 s54, s7, 288
    s_lshl_b32 s30, s5, 4
    s_add_u32 s54, s54, s30
    s_mul_i32 s55, s54, 192
    s_mul_i32 s54, s54, 1152
    s_mul_i32 s30, s4, 192
    s_add_u32 s54, s54, s30
    s_lshl_b32 s56, s3, 6
    s_lshl_b32 s31, s6, 4
    s_add_u32 s56, s56, s31
    s_mul_i32 s56, s56, 1152
    s_add_u32 s56, s56, s30          ; x soffset
    s_mul_i32 s57, s6, 3072
    s_mul_i32 s58, s4, 6
    s_mul_i32 s31, s7, 3
    s_add_u32 s58, s58, s31
    s_lshl_b32 s59, s58, 6
    v_lshlrev_b32 v2, 4, v1
    v_lshrrev_b32 v11, 5, v1
    v_lshlrev_b32 v12, 5, v11""")
    for n in range(192): assert (n*5462)>>16 == n//12
    for j in range(3):
        k(f"""v_add_u32 v3, {64*j}, v1
        v_mul_u32_u24 v4, 5462, v3
        v_lshrrev_b32 v4, 16, v4
        v_lshlrev_b32 v3, 4, v3
        v_mul_u32_u24 v4, {1152-192}, v4
        v_add_u32 v{8+j}, v3, v4""")
    k("s_waitcnt lgkmcnt(0)")
    k.srd(32, 28, 64*36*1024, OF); k.srd(36, 12, 576*1152); k.srd(44, 8, 2048*1152); k.srd(60, 28, 3456*4, MODF)
    vm = VM(k)
    stg = [range(0,5), range(5,10), range(10,18)]
    for st in range(3):
        for f in stg[st]:
            if f < 16:
                if f % 4 == 0 and f: k("s_add_u32 s52, s52, 4096")
                vm.issue(f"buffer_load_dwordx4 {v(OFR+4*f,4)}, v2, s[32:35], s52 offen offset:{1024*(f%4)}")
            else: vm.issue(f"buffer_load_dwordx4 {v(OFR+4*f,4)}, v2, s[32:35], s53 offen offset:{1024*(f-16)}")
        for j in range(3*st, 3*st+3):
            for p in range(3):
                k(f"s_add_u32 m0, s55, {j*6144+p*1024}")
                if p == 0 and j: k(f"s_add_u32 s54, s54, {32*1152}")
                vm.issue(f"buffer_load_dwordx4 v{8+p}, s[36:39], s54 offen lds", ("st", st))
    for p in range(3):
        k(f"s_add_u32 m0, s57, {XL+p*1024}\ns_nop 0")
        vm.issue(f"buffer_load_dwordx4 v{8+p}, s[44:47], s56 offen lds", "x")
    k(f"s_add_u32 s30, s59, {1152*4}\ns_add_u32 s31, s59, {2304*4}")
    for f in range(3):
        for h2 in range(2):
            vm.issue(f"buffer_load_dwordx4 {v(PRM+16*f+4*h2,4)}, v12, s[60:63], s30 offen offset:{64*f+16*h2}")
            vm.issue(f"buffer_load_dwordx4 {v(PRM+16*f+8+4*h2,4)}, v12, s[60:63], s31 offen offset:{64*f+16*h2}", "prm")
    tr_lane(k, 4, 5, 6); pi_c(k, 6, 7)
    k(f"""v_lshl_add_u32 v5, v11, 3, v5
    v_mul_u32_u24 v5, 192, v5
    v_lshl_add_u32 v5, v6, 3, v5
    s_mul_i32 s30, s7, {288*192}
    v_add_u32 v5, s30, v5
    v_and_b32 v4, 1, v4
    s_mul_i32 s30, s7, 3
    v_add_u32 v4, s30, v4""")
    for j in range(3):
        k(f"""v_add_u32 v6, {2*j}, v4
        v_subrev_u32 v7, 6, v6
        v_min_u32 v6, v6, v7
        v_lshl_add_u32 v{8+j}, v6, 5, v5""")
    def rd(f):
        b = WB + 12*(f % 3)
        if f == 16:
            k(f"v_mul_u32_u24 v7, {64*192}, v11")
            for j in range(3): k(f"v_add_u32 v{8+j}, v7, v{8+j}")
        for j in range(3):
            for i in range(2):
                row = 18*f + 2*(f & 1) + 4*i if f < 16 else 36*(4*(f-16)+i) + 16
                k(f"ds_read_b64_tr_b16 {v(b+4*j+2*i,2)}, v{8+j} offset:{row*192}")
    first = {0: 0, 5: 1, 10: 2}
    def rds(f):
        if f in first: vm.wait(("st", first[f])); k("s_barrier"); k.stamp(1+first[f])
        rd(f)
    rds(0); rds(1)
    for f in range(18):
        if f+2 < 18: rds(f+2)
        k(f"s_waitcnt lgkmcnt({6*min(2,17-f)})")
        b = WB + 12*(f % 3)
        for j in range(3):
            A = v(ACC+16*j,16)
            k(f"v_mfma_f32_32x32x16_bf16 {A}, {v(b+4*j,4)}, {v(OFR+4*f,4)}, {'0' if f==0 else A}")
    k(f"""s_mul_i32 s30, s6, 6144
    s_add_u32 s30, s30, {EX}
    v_add_u32 v3, s30, v2
    s_xor_b32 s31, s6, 2
    s_mul_i32 s31, s31, 6144
    s_add_u32 s31, s31, {EX}
    v_add_u32 v4, s31, v2
    v_and_b32 v5, 31, v1
    v_mul_u32_u24 v6, 192, v5
    v_lshl_add_u32 v6, v11, 4, v6
    s_mul_i32 s30, s5, {32*192}
    s_mul_i32 s31, s7, 96
    s_add_u32 s30, s30, s31
    s_add_u32 s30, s30, {XL}
    v_add_u32 v6, s30, v6""")
    for j in range(6): k(f"ds_write_b128 v3, {v(ACC+24+4*j,4)} offset:{1024*j}")
    k.srd(32, 28, 64*36*1024, X1F); k.srd(36, 28, 64*36*1024, YF); k.srd(44, 28, 64*12*256, ST2)
    k(f"""s_lshl_b32 s58, s58, 10
    s_add_u32 s58, s58, s51
    s_mul_i32 s50, s50, 12
    s_lshl_b32 s4, s4, 1
    s_add_u32 s50, s50, s4
    s_add_u32 s50, s50, s7
    s_lshl_b32 s50, s50, 8
    s_mov_b32 s31, 0xffff0000
    s_waitcnt vmcnt(0) lgkmcnt(0)
    s_barrier""")
    k.stamp(4)
    for j in range(6): k(f"ds_read_b128 {v(OFR+4*j,4)}, v4 offset:{1024*j}")
    for f in range(3): k(f"ds_read_b128 {v(OFR+24+4*f,4)}, v6 offset:{32*f}")
    k("s_waitcnt lgkmcnt(3)")
    for j in range(12): k(f"v_pk_add_f32 {v(ACC+2*j,2)}, {v(ACC+2*j,2)}, {v(OFR+2*j,2)}")
    k("s_waitcnt lgkmcnt(0)")
    T = OFR + 40;
    for f in range(3):
        xr = OFR+24+4*f
        for j in range(4): k(f"v_lshlrev_b32 v{T+2*j}, 16, v{xr+j}\nv_and_b32 v{T+2*j+1}, s31, v{xr+j}")
        for j in range(4): k(f"v_pk_fma_f32 {v(T+2*j,2)}, {v(ACC+8*f+2*j,2)}, {v(PRM+16*f+2*j,2)}, {v(T+2*j,2)}")
        for j in range(4): k(f"v_cvt_pk_bf16_f32 v{xr+j}, v{T+2*j}, v{T+2*j+1}")
        k(f"buffer_store_dwordx4 {v(xr,4)}, v2, s[32:35], s58 offen offset:{1024*f}")
        for j in range(4): k(f"v_lshlrev_b32 v{T+2*j}, 16, v{xr+j}\nv_and_b32 v{T+2*j+1}, s31, v{xr+j}")
        for j in range(4):
            if f == 0 and j == 0: k(f"v_pk_mul_f32 v[14:15], {v(T,2)}, {v(T,2)}\nv_mov_b32 v12, v{T}\nv_mov_b32 v13, v{T+1}")
            else: k(f"v_pk_fma_f32 v[14:15], {v(T+2*j,2)}, {v(T+2*j,2)}, v[14:15]\nv_pk_add_f32 v[12:13], v[12:13], {v(T+2*j,2)}")
        for j in range(4): k(f"v_pk_mul_f32 {v(T+2*j,2)}, {v(T+2*j,2)}, {v(PRM+16*f+8+2*j,2)}")
        for j in range(4): k(f"v_cvt_pk_bf16_f32 v{OFR+4*f+j}, v{T+2*j}, v{T+2*j+1}")
        k(f"buffer_store_dwordx4 {v(OFR+4*f,4)}, v2, s[36:39], s58 offen offset:{1024*f}")
    k(f"""v_add_f32 v12, v12, v13
    v_add_f32 v13, v14, v15
    v_mov_b32 v14, v12
    v_mov_b32 v15, v13
    v_lshlrev_b32 v5, 3, v5
    v_permlane32_swap_b32 v12, v14
    v_permlane32_swap_b32 v13, v15
    v_pk_add_f32 v[12:13], v[12:13], v[14:15]
    s_mov_b32 exec_hi, 0
    buffer_store_dwordx2 v[12:13], v5, s[44:47], s50 offen
    s_endpgm""")
    k(f"""K3_U:
    s_bfe_u32 s4, s2, 0x30003
    s_lshl_b32 s5, s6, 3
    s_add_u32 s4, s4, s5
    s_cmp_ge_u32 s4, 18
    s_cbranch_scc1 END_k3_kernel
    s_and_b32 s3, s2, 7
    s_mul_i32 s5, s3, 18
    s_add_u32 s4, s4, s5             ; tile
    s_and_b32 s3, s3, 1
    s_mul_i32 s3, s3, {WSZ}
    s_mul_i32 s5, s4, {36*1024}
    s_add_u32 s5, s5, s3
    s_lshl_b32 s4, s4, 9
    s_lshl_b32 s7, s6, 12
    s_mov_b32 m0, s7
    s_mov_b32 s30, {1728*2}
    v_lshlrev_b32 v2, 4, v1
    v_bfe_u32 v6, v1, 2, 1
    v_xor_b32 v6, 1, v6
    v_mul_u32_u24 v6, 1152, v6
    v_lshrrev_b32 v7, 5, v1
    v_lshl_add_u32 v6, v7, 4, v6
    v_add_u32 v6, s7, v6
    s_waitcnt lgkmcnt(0)""")
    k.srd(32, 28, 2*WSZ, W1F); k.srd(36, 28, 3456*2, MODB); k.srd(44, 28, 144*512, UVF)
    for j in range(3): k(f"buffer_load_dwordx4 v2, s[36:39], s30 offen offset:{1024*j} lds")
    for s_ in range(36):
        k(f"buffer_load_dwordx4 {v(64+4*s_,4)}, v2, s[32:35], s5 offen offset:{1024*(s_%4)}")
        if s_ % 4 == 3: k("s_add_u32 s5, s5, 4096")
    k("s_waitcnt vmcnt(36)")
    for s0 in range(0, 36, 4):
        b = 24 + 16*((s0//4) % 2)
        for s_ in range(4): k(f"ds_read_b128 {v(b+4*s_,4)}, v6 offset:{32*(s0+s_)}")
        k(f"s_waitcnt vmcnt({32-s0}) lgkmcnt(0)")
        for s_ in range(4): k(f"v_mfma_f32_32x32x16_bf16 v[8:23], {v(b+4*s_,4)}, {v(64+4*(s0+s_),4)}, {'0' if s0+s_==0 else 'v[8:23]'}")
    k(f"""v_lshlrev_b32 v2, 3, v1
    v_cvt_pk_bf16_f32 v5, v8, 0
    v_lshlrev_b32 v4, 16, v5
    v_sub_f32 v4, v8, v4
    v_cvt_pk_bf16_f32 v4, v8, v4
    buffer_store_dwordx2 v[4:5], v2, s[44:47], s4 offen""")
    tail(k)
    return k

def later():
    ks = [K2(), K3()]
    try:
        from k456 import K4, K5, K6
        ks += [K4(), K5(), K6()]
    except ImportError: pass
    return ks
```

```python
from lib import *
from k01 import *
from k26 import pi_c

def K4():
    SL = 24576; NS = 6
    SC = " sc1" if int(os.environ.get("K4SC", 1)) else ""
    YU = int(os.environ.get("K4YU", 16)); X = os.environ.get("K4X", "")
    k = K("k4_kernel", 256, 512, SL*NS, 112, na=144)
    head(k, 256)
    ACC=[48, 80]; WB=16; UV=12; ST=80; T=8
    A0=0; A1=1; HS=2; L8=3; BX=4; NRL=6; SIG=7; L16=8; AS=14
    k(f"""s_and_b32 s3, s2, 1
    s_lshl_b32 s3, s3, 3
    s_bfe_u32 s4, s2, 0x30003
    s_add_u32 s3, s3, s4             ; rb
    s_bfe_u32 s4, s2, 0x20001
    s_lshl_b32 s4, s4, 2
    s_lshr_b32 s5, s2, 6
    s_add_u32 s4, s4, s5             ; fb
    s_mul_i32 s50, s4, 9
    s_add_u32 s51, s50, 8
    s_cmp_ge_u32 s6, 4
    s_cbranch_scc1 K4_LD
    s_lshl_b32 s3, s3, 2
    s_add_u32 s3, s3, s6
    s_mul_i32 s52, s3, {36*1024}     ; y base
    s_mul_i32 s53, s3, {12*256}
    s_lshl_b32 s54, s50, 9
    s_lshl_b32 s55, s51, 9
    s_mul_i32 s30, s3, {2*147456}
    s_lshl_b32 s59, s50, 10
    s_add_u32 s59, s59, s30
    s_lshl_b32 s64, s51, 10
    s_add_u32 s64, s64, s30
    v_lshlrev_b32 v{L16}, 4, v1
    v_lshlrev_b32 v{L8}, 3, v1
    v_lshrrev_b32 v11, 5, v1         ; hf
    v_and_b32 v10, 31, v1            ; tok
    v_mul_u32_u24 v4, {6*256}, v11
    v_lshl_add_u32 v4, v10, 3, v4
    s_waitcnt lgkmcnt(0)""")
    k.srd(32, 28, 64*36*1024, YF); k.srd(44, 28, 64*12*256, ST2); k.srd(60, 28, 144*512, UVF)
    k.srd(68, 28, 128*147456, HF)
    vm = VM(k)
    for j in range(6): vm.issue(f"buffer_load_dwordx2 {v(ST+2*j,2)}, v4, s[44:47], s53 offen offset:{256*j}", "st")
    def uvld(g):
        if g < 4:
            for t in range(2): vm.issue(f"buffer_load_dwordx2 {v(UV+2*t,2)}, v{L8}, s[60:63], s54 offen offset:{512*(2*g+t)}", ("uv", g))
        else: vm.issue(f"buffer_load_dwordx2 {v(UV,2)}, v{L8}, s[60:63], s55 offen", ("uv", g))
    def yld(s):
        if s % 4 == 0 and s: k("s_add_u32 s52, s52, 4096")
        vm.issue(f"buffer_load_dwordx4 {a(4*s,4)}, v{L16}, s[32:35], s52 offen offset:{1024*(s%4)}", ("y", s))
    uvld(0)
    for s in range(YU): yld(s)
    k(f"""v_lshrrev_b32 v4, 4, v10
    s_mov_b32 s30, 147456
    v_mul_lo_u32 v4, v4, s30
    v_and_b32 v5, 15, v10
    v_lshl_add_u32 v4, v11, 8, v4
    v_lshl_add_u32 v{HS}, v5, 4, v4
    v_cmp_gt_u32 vcc, 32, v1""")
    k(f"v_lshlrev_b32 v{A0}, 4, v1")
    vm.wait("st")
    k(f"""v_pk_add_f32 {v(ST,2)}, {v(ST,2)}, {v(ST+2,2)}
    v_pk_add_f32 {v(ST+4,2)}, {v(ST+4,2)}, {v(ST+6,2)}
    v_pk_add_f32 {v(ST+8,2)}, {v(ST+8,2)}, {v(ST+10,2)}
    v_pk_add_f32 {v(ST,2)}, {v(ST,2)}, {v(ST+4,2)}
    v_pk_add_f32 {v(ST,2)}, {v(ST,2)}, {v(ST+8,2)}
    v_mov_b32 v{ST+2}, v{ST}
    v_mov_b32 v{ST+3}, v{ST+1}
    v_permlane32_swap_b32 v{ST}, v{ST+2}
    v_permlane32_swap_b32 v{ST+1}, v{ST+3}
    v_pk_add_f32 {v(ST,2)}, {v(ST,2)}, {v(ST+2,2)}
    v_mul_f32 v{ST}, {f2u(-1/576.)}, v{ST}        ; -mu
    v_mul_f32 v{ST+1}, {f2u(1/576.)}, v{ST+1}
    v_fma_f32 v{ST+1}, -v{ST}, v{ST}, v{ST+1}
    v_max_f32 v{ST+1}, 0, v{ST+1}
    v_add_f32 v{ST+1}, {f2u(1e-5)}, v{ST+1}
    v_sqrt_f32 v{SIG}, v{ST+1}
    v_rsq_f32 v{NRL}, v{ST+1}
    v_cndmask_b32 v{ST}, v{SIG}, v{ST}, vcc
    v_mul_f32 v{NRL}, {f2u(-LOG2E)}, v{NRL}
    v_cvt_pk_bf16_f32 v{BX}, v{ST}, v{ST}
    v_lshlrev_b32 v{ST+1}, 16, v{BX}
    v_sub_f32 v{ST+1}, v{ST}, v{ST+1}
    v_cvt_pk_bf16_f32 v{BX+1}, v{ST+1}, 0""")
    steps = [(g, s) for g in range(5) for s in range(36)]
    def rd(i):
        g, s = steps[i]; n = 3*g + s//12; slot = n % NS; b = WB + 8*(i % 4); L = []
        if s % 12 == 0:
            L.append(("bar", n))
            if n % 2 == 0 and n:
                d = 2*SL if slot else -4*SL
                L.append(f"v_add_u32 v{A0}, {d & 0xffffffff}, v{A0}")
        ks = s % 12
        for t in range(nrd(i)): L.append(f"ds_read_b128 {v(b+4*t,4)}, v{A0} offset:{(slot%2)*SL+1024*ks+12288*t}")
        return L
    def nrd(i): return 2 if steps[i][0] < 4 else 1
    def silu_ops(g):
        acc = ACC[g % 2]; nt = 2 if g < 4 else 1; ops = []
        for q in range(2*nt):
            pk = acc + 8*q
            for hh in range(2):
                r0 = acc + 8*q + 4*hh; t0 = T
                for j in range(4): ops.append(f"v_mul_f32 v{t0+j}, v{NRL}, v{r0+j}")
                for j in range(4): ops.append(f"v_exp_f32 v{t0+j}, v{t0+j}")
                for j in range(4): ops.append(f"v_fma_f32 v{t0+j}, v{t0+j}, v{SIG}, v{SIG}")
                for j in range(4): ops.append(f"v_rcp_f32 v{t0+j}, v{t0+j}")
                for j in range(4): ops.append(f"v_mul_f32 v{t0+j}, v{r0+j}, v{t0+j}")
                for j in range(2): ops.append(f"v_cvt_pk_bf16_f32 v{pk+2*hh+j}, v{t0+2*j}, v{t0+2*j+1}")
            so = "s59" if g < 4 else "s64"
            ops.append(("st", f"buffer_store_dwordx4 {v(pk,4)}, v{HS}, s[68:71], {so} offen offset:{512*q}{SC}"))
            if q == 3: ops.append("s_add_u32 s59, s59, 2048")
        return ops
    def cost(op): return 8 if isinstance(op, str) and op.startswith(("v_exp", "v_rcp")) else 4
    def emit(op):
        if isinstance(op, tuple):
            if op[0] == "bar":
                k("s_barrier")
                if op[1] in (0, 3, 6, 12): k.stamp({0:1, 3:2, 6:3, 12:4}[op[1]])
            elif "s" not in X: vm.issue(op[1])
        elif "v" in X and op.startswith(("v_mul", "v_exp", "v_fma", "v_rcp", "v_cvt")): pass
        elif "r" in X and op.startswith("ds_read"): pass
        else: k(op)
    LA = 3
    for i in range(LA):
        for op in rd(i): emit(op)
    ops = []
    for i, (g, s) in enumerate(steps):
        nt = 2 if g < 4 else 1; acc = ACC[g % 2]; b = WB + 8*(i % 4)
        if s == 0:
            assert not ops
            vm.wait(("uv", g))
            for t in range(nt):
                k(f"v_mfma_f32_32x32x8_bf16 {v(acc+16*t,16)}, {v(UV+2*t,2)}, {v(BX,2)}, 0")
            if g: ops = silu_ops(g-1); tot = sum(cost(o) for o in ops); done = 0
        if s == 2 and g < 4: uvld(g+1)
        R = rd(i+LA) if i+LA < len(steps) else []
        out = sum(nrd(j) for j in range(i+1, min(i+LA, len(steps))))
        if g == 0: vm.wait(("y", s), f" lgkmcnt({out})")
        else: k(f"s_waitcnt lgkmcnt({out})")
        for t in range(nt):
            k(f"v_mfma_f32_32x32x16_bf16 {v(acc+16*t,16)}, {v(b+4*t,4)}, {a(4*s,4)}, {v(acc+16*t,16)}")
            nr = len(R) - 1 if (t == 0 and nt == 2 and len(R) > 1) else len(R)
            for _ in range(nr): emit(R.pop(0))
            if g == 0 and t == 1 and s+YU < 36: yld(s+YU)
            if ops and s >= 1:
                tgt = tot * ((s-1)*nt+t+1) / (35*nt)
                while ops and done + cost(ops[0])/2 <= tgt: done += cost(ops[0]); emit(ops.pop(0))
                if s == 35 and t == nt-1:
                    while ops: emit(ops.pop(0))
    assert not ops
    for op in silu_ops(4): emit(op)
    k("s_endpgm")
    k(f"""K4_LD:
    s_sub_u32 s7, s6, 4
    s_and_b32 s30, s2, 1
    s_mul_i32 s30, s30, {WSZ}
    s_mul_i32 s56, s50, {36*1024}
    s_add_u32 s56, s56, s30
    s_mul_i32 s58, s7, 3072
    s_add_u32 s56, s56, s58          ; W soffset
    v_lshlrev_b32 v8, 4, v1
    v_lshlrev_b32 v10, 7, v1
    s_bfe_u32 s4, s2, 0x20001
    s_mul_i32 s4, s4, {1152*1152}
    s_lshr_b32 s5, s2, 3
    s_lshl_b32 s5, s5, 2
    s_add_u32 s5, s5, s7
    s_mul_i32 s5, s5, {81*128}
    s_add_u32 s4, s4, s5
    s_waitcnt lgkmcnt(0)""")
    k.srd(36, 28, 2*WSZ, W1F); k.srd(44, 28, WSZ, W2F)
    vm = VM(k)
    def dma(n):
        g, st = divmod(n, 3); slot = n % NS
        for t in range(2 if g < 4 else 1):
            k(f"s_add_u32 m0, s58, {slot*SL+12288*t}\ns_add_u32 s31, s56, {((2*g+t)*36+12*st)*1024}")
            for j in range(1 if "d" in X else 3): vm.issue(f"buffer_load_dwordx4 v8, s[36:39], s31 offen offset:{1024*j} lds", ("w", n))
    PRE = int(os.environ.get("K4PRE", 2))
    for n in range(PRE): dma(n)
    nxt = PRE
    for n in range(15):
        vm.wait(("w", n)); k("s_barrier")
        while nxt <= min(n+4, 14) and nxt <= 2*n+PRE+1: dma(nxt); nxt += 1
        if n == 10: touch(k, vm, 44, 4, 10, 2, 11)
    code_prefetch(k, "k5_kernel", "CODE_END", 12)
    tail(k)
    return k

def K5():
    SL = 36864
    SC = " sc1" if int(os.environ.get("K5SC", 1)) else ""
    k = K("k5_kernel", 256, 512, SL*4, 200, na=0)
    head(k, 256)
    ACC=24; HB=96; NH = 9; WB = 168; NW = 8
    k(f"""s_bfe_u32 s4, s2, 0x20001        ; sp
    s_lshr_b32 s5, s2, 6             ; cb
    s_cmp_ge_u32 s6, 4
    s_cbranch_scc1 K5_LD
    s_and_b32 s3, s2, 1
    s_lshl_b32 s3, s3, 3
    s_bfe_u32 s30, s2, 0x30003
    s_add_u32 s3, s3, s30            ; rb
    s_lshl_b32 s3, s3, 2
    s_add_u32 s3, s3, s6
    s_lshl_b32 s3, s3, 1
    s_mul_i32 s50, s3, 147456
    s_mul_i32 s30, s4, {36*1024}
    s_add_u32 s50, s50, s30          ; H base t0
    s_add_u32 s51, s50, 147456
    s_mul_i32 s54, s4, {2048*1152}
    s_lshl_b32 s30, s3, 2
    s_add_u32 s30, s30, s5
    s_mul_i32 s30, s30, 4608
    s_add_u32 s54, s54, s30
    s_add_u32 s55, s54, {4*4608}
    v_lshlrev_b32 v2, 4, v1
    s_waitcnt lgkmcnt(0)""")
    k.srd(32, 28, 128*147456, HF); k.srd(44, 28, 4*2048*1152, PART)
    vm = VM(k)
    def hld(s, t):
        if s % 4 == 0 and s: k(f"s_add_u32 s{50+t}, s{50+t}, 4096")
        vm.issue(f"buffer_load_dwordx4 {v(HB+8*(s%NH)+4*t,4)}, v2, s[32:35], s{50+t} offen offset:{1024*(s%4)}", ("h", s))
    for s in range(8): hld(s, 0); hld(s, 1)
    k(f"""v_mov_b32 v18, v2
    v_add_u32 v19, {SL}, v18
    v_add_u32 v20, {2*SL}, v18
    v_add_u32 v21, {3*SL}, v18
    v_lshlrev_b32 v3, 3, v1""")
    units = [(s, t) for s in range(36) for t in range(9)]
    def rd(i):
        s, t = units[i]; n = s // 4
        if s % 4 == 0 and t == 0:
            k("s_barrier")
            if n in (0, 1, 4): k.stamp({0:1, 1:2, 4:3}[n])
        b = WB + 4*(i % NW)
        k(f"ds_read_b128 {v(b,4)}, v{18+n%4} offset:{9216*(s%4)+1024*t}")
    LA = 7; WG = 3
    for i in range(LA): rd(i)
    NU = len(units)
    for i, (s, t) in enumerate(units):
        if i % WG == 0:
            lg = min(i+LA, NU) - (i+WG)
            if t == 0: vm.wait(("h", s), f" lgkmcnt({lg})")
            else: k(f"s_waitcnt lgkmcnt({lg})")
        b = WB + 4*(i % NW)
        for u in range(2):
            A = v(ACC+36*u+4*t,4)
            k(f"v_mfma_f32_16x16x32_bf16 {A}, {v(b,4)}, {v(HB+8*(s%NH)+4*u,4)}, {'0' if s==0 else A}")
            if i+LA < NU and u == 0: rd(i+LA)
            if u == 1 and t in (0, 3) and s+8 < 36: hld(s+8, t//3)
    k.stamp(4)
    for u in range(2):
        for j in range(18): k(f"v_cvt_pk_bf16_f32 v{HB+20*u+j}, v{ACC+36*u+2*j}, v{ACC+36*u+2*j+1}")
        for p in range(4): k(f"buffer_store_dwordx4 {v(HB+20*u+4*p,4)}, v2, s[44:47], s{54+u} offen offset:{1024*p}{SC}")
        k(f"s_add_u32 s{54+u}, s{54+u}, 4096\nbuffer_store_dwordx2 {v(HB+20*u+16,2)}, v3, s[44:47], s{54+u} offen{SC}")
    k("s_endpgm")
    k(f"""K5_LD:
    s_sub_u32 s7, s6, 4
    s_lshl_b32 s52, s4, 2
    s_add_u32 s52, s52, s5
    s_mul_i32 s52, s52, {36*9216}
    s_mul_i32 s53, s7, 9216
    s_add_u32 s52, s52, s53          ; W2 soffset
    v_lshlrev_b32 v8, 4, v1
    s_waitcnt lgkmcnt(0)""")
    k.srd(36, 28, WSZ, W2F)
    vm = VM(k)
    def dma(n):
        for j in range(9):
            if j % 3 == 0: k(f"s_add_u32 m0, s53, {(n%4)*SL+1024*j}\ns_add_u32 s31, s52, {n*SL+1024*j}")
            vm.issue(f"buffer_load_dwordx4 v8, s[36:39], s31 offen offset:{1024*(j%3)} lds", ("w", n))
    dma(0); dma(1)
    for n in range(9):
        vm.wait(("w", n)); k("s_barrier")
        if n+2 < 9: dma(n+2)
    tail(k)
    return k

def K6():
    k = K("k6_kernel", 256, 128, 0, 160)
    head(k, 256)
    PB=8; X=88; G=108; T=144
    k(f"""s_lshl_b32 s3, s2, 1
    s_add_u32 s3, s3, s6
    s_and_b32 s5, s3, 3              ; cb
    s_lshr_b32 s4, s3, 2             ; T
    s_mul_i32 s50, s3, 4608
    s_lshr_b32 s30, s4, 1
    s_mul_i32 s51, s30, 36
    s_mul_i32 s30, s5, 9
    s_add_u32 s51, s51, s30
    s_lshl_b32 s51, s51, 10
    s_and_b32 s30, s4, 1
    s_lshl_b32 s30, s30, 8
    s_add_u32 s51, s51, s30          ; x1 soffset
    s_mul_i32 s52, s5, 576
    s_add_u32 s52, s52, {2880*4}
    s_mul_i32 s53, s4, {16*1152}
    s_mul_i32 s30, s5, 288
    s_add_u32 s53, s53, s30
    v_lshlrev_b32 v2, 4, v1
    v_lshlrev_b32 v3, 3, v1
    v_lshrrev_b32 v4, 4, v1          ; q
    v_and_b32 v5, 15, v1             ; tok
    v_lshrrev_b32 v6, 1, v4
    v_lshlrev_b32 v6, 9, v6
    v_lshl_add_u32 v6, v5, 4, v6
    v_and_b32 v7, 1, v4
    v_lshl_add_u32 v6, v7, 3, v6     ; x1 voffset
    v_mul_u32_u24 v7, 1152, v5
    v_lshl_add_u32 v7, v4, 3, v7
    v_lshlrev_b32 v4, 4, v4
    s_waitcnt lgkmcnt(0)""")
    k.srd(32, 28, 4*2048*1152, PART); k.srd(36, 28, 64*36*1024, X1F); k.srd(44, 28, 3456*4, MODF); k.srd(56, 24, 2048*1152)
    for sp in range(4):
        for p in range(4): k(f"buffer_load_dwordx4 {v(PB+20*sp+4*p,4)}, v2, s[32:35], s50 offen offset:{1024*p}")
        k(f"s_add_u32 s30, s50, 4096\nbuffer_load_dwordx2 {v(PB+20*sp+16,2)}, v3, s[32:35], s30 offen\ns_add_u32 s50, s50, {2048*1152}")
    for t in range(9):
        if t % 4 == 0 and t: k("s_add_u32 s51, s51, 4096")
        k(f"buffer_load_dwordx2 {v(X+2*t,2)}, v6, s[36:39], s51 offen offset:{1024*(t%4)}")
        k(f"buffer_load_dwordx4 {v(G+4*t,4)}, v4, s[44:47], s52 offen offset:{64*t}")
    k("s_mov_b32 s31, 0xffff0000\ns_waitcnt vmcnt(0)"); k.stamp(1)
    for t in range(9):
        for j in range(2):
            r = 2*t+j; tt = T + 8*j
            for sp in range(4): k(f"v_lshlrev_b32 v{tt+2*sp}, 16, v{PB+20*sp+r}\nv_and_b32 v{tt+2*sp+1}, s31, v{PB+20*sp+r}")
            k(f"""v_pk_add_f32 {v(tt,2)}, {v(tt,2)}, {v(tt+2,2)}
            v_pk_add_f32 {v(tt+4,2)}, {v(tt+4,2)}, {v(tt+6,2)}
            v_lshlrev_b32 v{tt+2}, 16, v{X+r}
            v_and_b32 v{tt+3}, s31, v{X+r}
            v_pk_add_f32 {v(tt,2)}, {v(tt,2)}, {v(tt+4,2)}
            v_pk_fma_f32 {v(tt,2)}, {v(tt,2)}, {v(G+2*r,2)}, {v(tt+2,2)}
            v_cvt_pk_bf16_f32 v{X+r}, v{tt}, v{tt+1}""")
        k(f"buffer_store_dwordx2 {v(X+2*t,2)}, v7, s[56:59], s53 offen offset:{32*t}")
    tail(k)
    return k
```

```python
import re, os
STAMP = int(os.environ.get("STAMP", 0))
KIDX = {n + "_kernel": i for i, n in enumerate(["k0","k1","k2","km","k3","k4","k5","k6"])}
TRANS = ("v_exp_", "v_log_", "v_rcp_", "v_rsq_", "v_sqrt_", "v_sin_", "v_cos_")
def passes(op):
    if "_2b_" in op: return 16
    if "32x32" in op: return 8
    if "16x16" in op: return 4
    raise ValueError(op)
RD = {4: 8, 8: 12, 16: 20}
RC = {4: 6, 8: 10, 16: 18}
WARC = {4: 3, 8: 7, 16: 15}
def regs(tok):
    tok = tok.strip()
    m = re.fullmatch(r"-?\|?([vas])(\d+)\|?", tok)
    if m: return {(m.group(1), int(m.group(2)))}
    m = re.fullmatch(r"-?([vas])\[(\d+):(\d+)\]", tok)
    if m: return {(m.group(1), i) for i in range(int(m.group(2)), int(m.group(3)) + 1)}
    if tok == "vcc": return {("s", 106), ("s", 107)}
    if tok == "m0": return {("s", 124)}
    if tok == "exec": return {("s", 126), ("s", 127)}
    return set()
class Ins:
    def __init__(s, text):
        s.text = text
        t = text.split(";")[0].strip()
        s.op = t.split()[0]
        rest = t[len(s.op):].strip()
        ops = [o.strip() for o in re.split(r",(?![^\[]*\])", rest)] if rest else []
        if ops:
            last = ops[-1].split()
            s.mods = " ".join(last[1:]); ops[-1] = last[0] if last else ""
        else: s.mods = ""
        s.ops = ops
        op = s.op
        s.mfma = op.startswith("v_mfma")
        s.valu = op.startswith("v_") and not s.mfma
        s.trans = op.startswith(TRANS)
        s.salu = op.startswith("s_")
        s.vmem = op.startswith(("buffer_", "global_"))
        s.ds = op.startswith("ds_")
        s.dpp = "row_" in s.mods or "quad_perm" in s.mods
        s.states = 1
        if op == "s_nop": s.states = int(ops[0]) + 1
        R = [regs(o) for o in ops]
        s.w = set(); s.r = set(); s.c = set(); s.ab = set(); s.sdata = set()
        if s.mfma:
            s.w = R[0]; s.ab = R[1] | R[2]; s.c = R[3]; s.r = s.ab | s.c; s.p = passes(op)
        elif s.valu:
            if "swap" in op: s.w = R[0] | R[1]; s.r = R[0] | R[1]
            elif op.startswith("v_cmp"): s.w = R[0]; s.r = set().union(*R[1:])
            elif "_co_" in op: s.w = R[0] | R[1]; s.r = set().union(*R[2:])
            else:
                s.w = R[0]; s.r = set().union(*R[1:]) if len(R) > 1 else set()
                if op.startswith(("v_fmac", "v_dot2c", "v_writelane")) or s.dpp: s.r |= R[0]
        elif s.vmem:
            if "lds" in s.mods.split(): s.r = set().union(*R) | regs("m0"); s.dma = True
            elif "store" in op:
                s.r = set().union(*R)
                d = R[0] if op.startswith("buffer") else R[1]
                if "x4" in op or "x3" in op: s.sdata = d
            elif "atomic" in op: s.r = set().union(*R); s.w = R[0] if "sc0" in s.mods else set()
            else: s.w = R[0]; s.r = set().union(*R[1:])
        elif s.ds:
            if "read" in op or "permute" in op or "swizzle" in op: s.w = R[0]; s.r = set().union(*R[1:])
            else: s.r = set().union(*R)
        elif s.salu and R:
            if op.startswith(("s_cmp", "s_cbranch", "s_branch", "s_waitcnt", "s_barrier", "s_setprio", "s_sleep")): s.r = set().union(*R)
            else: s.w = R[0]; s.r = set().union(*R[1:]) if len(R) > 1 else set()
            if "saveexec" in op: s.w |= regs("exec")
def need(p, c):
    n = 0
    vw = {x for x in p.w if x[0] != "s"}; sw = {x for x in p.w if x[0] == "s"}
    if p.valu:
        if c.mfma and vw & c.r: n = max(n, 2)
        if p.trans and (c.valu and not c.trans) and vw & c.r: n = max(n, 1)
        if p.trans and (c.vmem or c.ds) and vw & c.r: n = max(n, 1)
        if c.valu and ("permlane" in c.op or c.dpp) and vw & c.r: n = max(n, 2)
        if c.valu and c.op.startswith(("v_readfirstlane", "v_readlane")) and vw & c.r: n = max(n, 1)
        if sw and c.valu and sw & c.r: n = max(n, 4 if "lane" in c.op and "first" not in c.op and "perm" not in c.op else 2)
        if sw and c.vmem and sw & c.r: n = max(n, 5)
        if sw and c.salu and sw & c.r: n = max(n, 1)
        if ("op_sel" in p.mods and "pk_" not in p.op or "sdwa" in p.op) and c.valu and vw & (c.r | c.w): n = max(n, 1)
        if p.op.startswith("v_dot") and (c.valu or c.mfma) and vw & (c.r | c.w) and not (c.op == p.op): n = max(n, 3)
    if p.mfma:
        if c.mfma:
            if p.w & c.ab: n = max(n, RD[p.p])
            if p.w & c.c and not (p.w == c.c and p.p == c.p): n = max(n, RC[p.p])
            if p.w & c.w and not (p.w & c.c): n = max(n, RC[p.p])
        elif c.valu or c.vmem or c.ds:
            if p.w & (c.r | c.w): n = max(n, RD[p.p])
        if c.valu and p.c & c.w: n = max(n, WARC[p.p])
    if p.salu and ("s", 124) in p.w and c.vmem and getattr(c, "dma", False): n = max(n, 1)
    if p.sdata and (c.valu or c.ds or c.vmem or c.mfma) and p.sdata & c.w: n = max(n, 2)
    if (p.vmem or p.ds) and c.valu and c.dpp and vw & c.r: n = max(n, 0)
    return n
class K:
    def __init__(s, name, grid, block, lds, nv, na=0, ns=96):
        s.name, s.grid, s.block, s.lds, s.nv, s.na, s.ns = name, grid, block, lds, nv, na, ns
        s.L = []
        s.nops = 0
    def __call__(s, text):
        for ln in text.split("\n"):
            t = ln.strip()
            if not t or t.startswith(";"): continue
            if t.endswith(":") or t.startswith("."):
                if STAMP and t == f"END_{s.name}:" and not (isinstance(s.L[-1], Ins) and s.L[-1].op in ("s_endpgm", "s_branch")): s("s_endpgm")
                s.L.append(t); continue
            if STAMP and t == "s_endpgm" and s.L[-1] != f"END_{s.name}:": s.dump()
            s.add(Ins(t))
    def stamp(s, i):
        if STAMP: s.add(Ins(f"s_memtime s[{80+2*i}:{81+2*i}]"))
    def dump(s):
        idx = KIDX[s.name]
        for t in f"""s_waitcnt vmcnt(0) lgkmcnt(0)
s_memtime s[92:93]
s_memrealtime s[94:95]
s_add_u32 s72, s28, {0x8000000 + idx*0x40000}
s_addc_u32 s73, s29, 0
s_mov_b32 s74, 0x40000
s_mov_b32 s75, 0x20000
s_lshl_b32 s76, s2, 4
s_add_u32 s76, s76, s6
s_lshl_b32 s76, s76, 5
s_mov_b64 exec, 1
s_waitcnt lgkmcnt(0)
v_mov_b32 v4, s78
v_mov_b32 v5, s94
v_mov_b32 v6, s80
v_mov_b32 v7, s82
v_mov_b32 v8, s84
v_mov_b32 v9, s86
v_mov_b32 v10, s88
v_mov_b32 v11, s92
v_mov_b32 v2, 0
buffer_store_dwordx4 v[4:7], v2, s[72:75], s76 offen
buffer_store_dwordx4 v[8:11], v2, s[72:75], s76 offen offset:16""".split("\n"): s.add(Ins(t))
    def hist(s):
        return [x for x in s.L[-60:] if isinstance(x, Ins)]
    def add(s, c):
        d = 0; pad = 0
        for p in reversed(s.hist()):
            n = need(p, c)
            if n > d: pad = max(pad, n - d)
            d += p.states
            if d >= 20: break
        while pad > 0:
            k = min(pad, 16); s.L.append(Ins(f"s_nop {k-1}")); pad -= k; s.nops += 1
        s.L.append(c)
    def check_loop(s, label):
        i = s.L.index(label + ":")
        body = [x for x in s.L[i:] if isinstance(x, Ins)]
        seq = body + body[:25]
        for j in range(len(body), len(seq)):
            d = 0
            for p in reversed(seq[max(0, j - 25):j]):
                assert need(p, seq[j]) <= d, (s.name, label, p.text, seq[j].text)
                d += p.states
    def text(s):
        o = [f".globl {s.name}", ".p2align 8", f".type {s.name},@function", f"{s.name}:"]
        for x in s.L: o.append(x if isinstance(x, str) else "    " + x.text)
        return "\n".join(o) + "\n"
    def desc(s):
        acc = (s.nv + 3) // 4 * 4
        tot = acc + s.na if s.na else s.nv
        return f""".p2align 6
.amdhsa_kernel {s.name}
  .amdhsa_next_free_vgpr {tot}
  .amdhsa_next_free_sgpr {s.ns}
  .amdhsa_accum_offset {acc}
  .amdhsa_group_segment_fixed_size 0
  .amdhsa_kernarg_size 88
  .amdhsa_user_sgpr_count 2
  .amdhsa_user_sgpr_kernarg_segment_ptr 1
  .amdhsa_system_sgpr_workgroup_id_x 1
.end_amdhsa_kernel
"""
    def launch(s): return f"; @launch kernel={s.name} grid=({s.grid},1,1) block=({s.block},1,1) lds={s.lds}"
    def srd(s, d, b, nbytes, off=0):
        if off:
            s(f"s_add_u32 s{d}, s{b}, {off}\ns_addc_u32 s{d+1}, s{b+1}, 0")
        else:
            s(f"s_mov_b32 s{d}, s{b}\ns_mov_b32 s{d+1}, s{b+1}")
        s(f"s_mov_b32 s{d+2}, {nbytes}\ns_mov_b32 s{d+3}, 0x20000")
def v(a, n=1): return f"v{a}" if n == 1 else f"v[{a}:{a+n-1}]"
def a(x, n=1): return f"a{x}" if n == 1 else f"a[{x}:{x+n-1}]"
def sr(x, n=4): return f"s[{x}:{x+n-1}]"
```

```python
from lib import *
from k01 import *

def pi_c(k, vc, vt):
    k(f"v_and_b32 {v(vt)}, 1, {v(vc)}\nv_lshrrev_b32 {v(vc)}, 1, {v(vc)}\nv_lshl_add_u32 {v(vc)}, {v(vt)}, 1, {v(vc)}")

def K2():
    SD = int(os.environ.get("K2SD", 0)); PR = int(os.environ.get("K2PR", 3)); TH = [int(x) for x in os.environ.get("K2TH", "4,6,7").split(",")]
    FLAG = 163840-16; X2 = os.environ.get("K2X", "z")
    k = K("k2_kernel", 256, 576, 163840, 168)
    head(k, 256)
    S=[16,32]; O=48; P=64; QL=72; QH=76; KL=80; KH=78; V0=84; V1=88
    AKL=8; AKH=9; AV=[10,11]
    k(f"""s_and_b32 s3, s2, 7
    s_lshl_b32 s3, s3, 2
    s_bfe_u32 s4, s2, 0x20003
    s_add_u32 s3, s3, s4             ; head
    s_lshr_b32 s4, s2, 5
    s_lshl_b32 s4, s4, 3
    s_add_u32 s4, s4, s6             ; q tile
    s_mul_i32 s5, s3, {HIMG}
    s_mul_i32 s7, s4, {TIMG}
    s_add_u32 s7, s7, s5
    s_lshl_b32 s30, s6, 10
    s_add_u32 s31, s5, s30
    v_lshlrev_b32 v2, 4, v1
    v_and_b32 v3, 31, v1
    v_lshlrev_b32 v3, 2, v3
    s_cmp_eq_u32 s6, 8
    s_waitcnt lgkmcnt(0)""")
    k.srd(36, 28, 32*HIMG, 0)
    k(f"""s_cbranch_scc1 K2_HELP
    s_add_u32 s36, s28, {KVIMG}
    s_addc_u32 s37, s29, 0""")
    k.srd(32, 28, 32*HIMG, QIMG); k.srd(44, 28, 64*36*1024, OF)
    k(f"""buffer_load_dwordx4 {v(QL,4)}, v2, s[32:35], s7 offen
    buffer_load_dword v{QH}, v3, s[32:35], s7 offen offset:2304
    buffer_load_dwordx4 {v(KL,4)}, v2, s[36:39], s5 offen
    buffer_load_dword v{KH}, v3, s[36:39], s5 offen offset:2304""")
    for j in range(3):
        k(f"s_add_u32 m0, s30, {8192*j}\ns_add_u32 s7, s31, {8192*j}\nbuffer_load_dwordx4 v2, s[36:39], s7 offen lds")
    tr_lane(k, 4, 5, 6); pi_c(k, 6, 7)
    k(f"""v_lshrrev_b32 v7, 1, v4
    v_lshl_add_u32 v5, v7, 2, v5     ; 4hf+r
    v_lshlrev_b32 v12, 5, v5
    v_lshl_add_u32 v12, v6, 3, v12   ; lo
    v_lshlrev_b32 v13, 3, v5
    v_add_u32 v13, 512, v13          ; hi
    v_and_b32 v4, 1, v4
    v_cmp_eq_u32 vcc, 1, v4
    v_add_u32 v14, 256, v12
    v_add_u32 v15, 64, v13
    v_cndmask_b32 v12, v12, v13, vcc
    v_cndmask_b32 v13, v14, v15, vcc
    {'''v_and_b32 v4, 3, v1
    v_cmp_ne_u32 s[48:49], 0, v4
    s_and_b64 vcc, vcc, s[48:49]
    v_mov_b32 v4, 0x100000
    v_cndmask_b32 v12, v12, v4, vcc
    v_cndmask_b32 v13, v13, v4, vcc''' if 'z' in X2 else ''}
    v_cmp_gt_u32 s[48:49], 32, v1
    v_mov_b32 v{KH+1}, 0x3f803f80
    s_mov_b32 s40, 0
    s_mov_b32 s41, 1
    s_lshr_b32 s43, s6, 2
    v_mov_b32 v{QH+1}, 0
    v_mov_b32 v14, 0xff800000
    s_waitcnt vmcnt(3)
    v_cndmask_b32 v{QH}, 0, v{QH}, s[48:49]
    s_branch K2_MAX1
    K2_RESTART:
    v_mov_b32 v{QH+1}, 0
    v_mov_b32 v14, 0xff800000
    v_mov_b32 v{AKL}, v2
    v_mov_b32 v{AKH}, v3
    K2_MAX:
    ds_read_b32 v{KH}, v{AKH} offset:2304
    ds_read_b128 {v(KL,4)}, v{AKL}
    v_add_u32 v{AKH}, {TIMG}, v{AKH}
    v_add_u32 v{AKL}, {TIMG}, v{AKL}
    s_waitcnt lgkmcnt(0)
    K2_MAX1:
    s_nop 1
    v_mfma_f32_32x32x8_bf16 {v(S[0],16)}, {v(KH,2)}, {v(QH,2)}, 0
    v_mfma_f32_32x32x16_bf16 {v(S[0],16)}, {v(KL,4)}, {v(QL,4)}, {v(S[0],16)}
    s_sub_u32 s41, s41, 1""")
    for j in range(8): k(f"v_max3_f32 v14, v{S[0]+2*j}, v{S[0]+2*j+1}, v14")
    k(f"""s_cmp_lg_u32 s41, 0
    s_cbranch_scc1 K2_MAX""")
    k.check_loop("K2_MAX"); k.stamp(1)
    k(f"""v_mov_b32 v15, v14
    v_mov_b32 v{AKL}, v2
    v_mov_b32 v{AKH}, v3
    v_permlane32_swap_b32 v14, v15
    v_max_f32 v14, v14, v15
    v_cvt_pk_bf16_f32 v15, -v14, -v14
    v_mov_b32 v{AV[0]}, v12
    v_lshlrev_b32 v4, 16, v15
    v_add_f32 v4, v4, v14
    v_cvt_pk_bf16_f32 v4, -v14, -v4
    v_mov_b32 v{AV[1]}, v13
    v_cndmask_b32 v{QH+1}, 0, v4, s[48:49]""")
    for r in range(16): k(f"v_mov_b32 v{O+r}, 0")
    for r in range(4): k(f"v_mov_b32 v{P+4+r}, 0\nv_mov_b32 v{V1+r}, 0")
    k(f"""s_cmp_lg_u32 s40, 0
    s_cbranch_scc1 K2_NB
    s_waitcnt vmcnt(0)
    s_barrier
    K2_NB:
    ds_read_b32 v{KH}, v{AKH} offset:2304
    ds_read_b128 {v(KL,4)}, v{AKL}
    ds_read_b64_tr_b16 {v(V0,2)}, v{AV[0]} offset:1024
    ds_read_b64_tr_b16 {v(V0+2,2)}, v{AV[1]} offset:1024
    s_waitcnt lgkmcnt(2)
    v_mfma_f32_32x32x8_bf16 {v(S[0],16)}, {v(KH,2)}, {v(QH,2)}, 0
    v_mfma_f32_32x32x16_bf16 {v(S[0],16)}, {v(KL,4)}, {v(QL,4)}, {v(S[0],16)}
    ds_read_b32 v{KH}, v{AKH} offset:{2304+TIMG}
    ds_read_b128 {v(KL,4)}, v{AKL} offset:{TIMG}
    s_mov_b32 s42, 8
    s_nop 7
    s_waitcnt lgkmcnt(0)""")
    k.stamp(2)
    if PR == 2: k("s_cmp_eq_u32 s43, 0\ns_cbranch_scc1 K2_LOOP\ns_setprio 1")
    if PR == 3: k("s_setprio 3")
    k(f"""s_mov_b32 s43, {2+sum(1<<x for x in TH)}
    K2_LOOP:
    s_bitcmp1_b32 s43, s40
    s_cbranch_scc1 K2_SYNC
    K2_BACK:""")
    for t in range(8):
        c = S[t % 2]; n = S[(t+1) % 2]
        if SD:
            e = lambda i: k(f"v_exp_f32 v{P+i//2 if i%2 else c+i}, v{c+i}")
            cv = lambda i: k(f"v_mov_b32_sdwa v{P+i}, v{c+2*i} dst_sel:WORD_0 dst_unused:UNUSED_PRESERVE src0_sel:WORD_1")
        else:
            e = lambda i: k(f"v_exp_f32 v{c+i}, v{c+i}")
            cv = lambda i: k(f"v_cvt_pk_bf16_f32 v{P+i}, v{c+2*i}, v{c+2*i+1}")
        if PR == 1 and t % 4 == 0:
            k(f"""s_xor_b32 s43, s43, 1
            s_setprio 0
            s_cbranch_scc0 K2_P{t}
            s_setprio 1
            K2_P{t}:""")
        k(f"""s_waitcnt lgkmcnt(5)
        v_mfma_f32_32x32x8_bf16 {v(n,16)}, {v(KH,2)}, {v(QH,2)}, 0
        ds_read_b32 v{KH}, v{AKH} offset:{2304+TIMG*(t+2)}""")
        e(0); e(1); e(2); e(3)
        k(f"""s_waitcnt lgkmcnt(4)
        v_mfma_f32_32x32x16_bf16 {v(O,16)}, {v(V1,4)}, {v(P+4,4)}, {v(O,16)}
        ds_read_b64_tr_b16 {v(V1,2)}, v{AV[0]} offset:{1024+640+TIMG*t}
        ds_read_b64_tr_b16 {v(V1+2,2)}, v{AV[1]} offset:{1024+640+TIMG*t}""")
        cv(0); e(4); cv(1); e(5); e(6); e(7)
        k(f"""s_waitcnt lgkmcnt(5)
        v_mfma_f32_32x32x16_bf16 {v(n,16)}, {v(KL,4)}, {v(QL,4)}, {v(n,16)}
        ds_read_b128 {v(KL,4)}, v{AKL} offset:{TIMG*(t+2)}""")
        cv(2); e(8); cv(3); e(9); e(10); e(11)
        k(f"""s_waitcnt lgkmcnt(4)
        v_mfma_f32_32x32x16_bf16 {v(O,16)}, {v(V0,4)}, {v(P,4)}, {v(O,16)}
        ds_read_b64_tr_b16 {v(V0,2)}, v{AV[0]} offset:{1024+TIMG*(t+1)}
        ds_read_b64_tr_b16 {v(V0+2,2)}, v{AV[1]} offset:{1024+TIMG*(t+1)}""")
        cv(4); e(12); cv(5); e(13); e(14); e(15)
        if t == 7:
            for r in (AKL, AKH, AV[0], AV[1]): k(f"v_add_u32 v{r}, {8*TIMG}, v{r}")
            k("s_sub_u32 s42, s42, 1\ns_add_u32 s40, s40, 1\ns_cmp_lg_u32 s42, 0")
        cv(6); cv(7)
    i0 = k.L.index("K2_BACK:")
    def drop(x, j):
        if not isinstance(x, Ins): return False
        return ("r" in X2 and x.ds) or ("m" in X2 and x.mfma) or ("e" in X2 and x.trans) or ("h" in X2 and x.ds and (j // 46) % 2)
    k.L[i0:] = [x for j, x in enumerate(k.L[i0:]) if not drop(x, j)]
    k("s_cbranch_scc1 K2_LOOP")
    if not X2.strip("z"): k.check_loop("K2_LOOP")
    k.stamp(4)
    k(f"""s_waitcnt lgkmcnt(0)
    v_mfma_f32_32x32x16_bf16 {v(O,16)}, {v(V1,4)}, {v(P+4,4)}, {v(O,16)}
    s_mul_i32 s4, s4, 36
    s_add_u32 s5, s4, s3
    s_lshl_b32 s5, s5, 10
    s_lshr_b32 s7, s3, 2
    s_lshl_b32 s7, s7, 9
    s_and_b32 s31, s3, 3
    s_lshl_b32 s31, s31, 2
    s_add_u32 s7, s7, s31
    s_add_u32 s31, s4, 32
    s_lshl_b32 s31, s31, 10
    s_add_u32 s7, s7, s31
    {f'v_mov_b32 v4, v{O+10}{chr(10)}v_permlane32_swap_b32 v{O+10}, v4' if 'z' in X2 else ''}
    v_cmp_gt_f32 vcc, {f2u(2.0**60)}, v{O+10}
    v_rcp_f32 v4, v{O+10}
    s_cmp_eq_u64 vcc, -1
    s_cbranch_scc1 K2_OUT
    s_cmp_ge_u32 s40, 100
    s_cbranch_scc1 K2_OUT
    s_mov_b32 s40, 100
    s_mov_b32 s41, 64
    s_lshr_b32 s4, s2, 5
    s_lshl_b32 s4, s4, 3
    s_add_u32 s4, s4, s6
    s_branch K2_RESTART
    K2_OUT:""")
    for r in range(10): k(f"v_mul_f32 v{O+r}, v4, v{O+r}")
    for r in range(5): k(f"v_cvt_pk_bf16_f32 v{P+r}, v{O+2*r}, v{O+2*r+1}")
    k(f"""buffer_store_dwordx4 {v(P,4)}, v2, s[44:47], s5 offen
    s_mov_b32 exec_hi, 0
    buffer_store_dword v{P+4}, v2, s[44:47], s7 offen
    s_endpgm
    K2_SYNC:
    s_cmp_eq_u32 s40, 1
    s_cbranch_scc1 K2_POLL
    s_setprio 2
    s_cmp_eq_u32 s40, {TH[0]}
    s_cbranch_scc1 K2_BACK
    s_setprio 1
    s_cmp_eq_u32 s40, {TH[1]}
    s_cbranch_scc1 K2_BACK
    s_setprio 0
    s_branch K2_BACK
    K2_POLL:
    v_mov_b32 v4, {FLAG}
    ds_read_b32 v4, v4
    s_waitcnt lgkmcnt(0)
    v_readfirstlane_b32 s41, v4
    s_cmp_eq_u32 s41, 1
    s_cbranch_scc0 K2_POLL""")
    k.stamp(3)
    k("s_branch K2_BACK")
    LH = HIMG
    HP = os.environ.get("K2HP", "03"); NB = int(os.environ.get("K2NB", 47))
    k(f"""K2_HELP:
    s_setprio {HP[0]}
    s_add_u32 s36, s28, {KVIMG}
    s_addc_u32 s37, s29, 0
    s_add_u32 s5, s5, 24576
    v_mov_b32 v8, {FLAG}
    v_mov_b32 v9, 0
    ds_write_b32 v8, v9
    v_mov_b32 v9, 1""")
    for j in range(128):
        if j % 4 == 0: k(f"s_mov_b32 m0, {24576+1024*j}" + ("\ns_add_u32 s5, s5, 4096" if j else "\ns_nop 0"))
        k(f"buffer_load_dwordx4 v2, s[36:39], s5 offen offset:{1024*(j%4)} lds")
        if j == NB: k(f"s_waitcnt lgkmcnt(0)\ns_barrier\ns_setprio {HP[1]}")
    k.srd(32, 16, 576*9216); k.srd(40, 18, 4608*1152); k.srd(44, 12, 576*1152); k.srd(48, 8, 2048*1152)
    k.srd(52, 28, 3456*4, MODF); k.srd(56, 28, W2F-W1F+WSZ, W1F)
    for n in range(36): assert (n*57)>>9 == n//9
    tr_lane(k, 4, 5, 6)
    k(f"""s_and_b32 s3, s2, 7              ; xcd
    s_lshr_b32 s4, s2, 3             ; j
    s_mul_i32 s61, s4, {162*128}
    s_mul_i32 s62, s3, {256*1152}
    s_mul_i32 s63, s4, {72*128}
    s_add_u32 s62, s62, s63          ; x soff
    s_and_b32 s63, s4, 1
    s_lshl_b32 s63, s63, 13
    s_mul_i32 s30, s4, 57
    s_lshr_b32 s30, s30, 9           ; sg
    s_mul_i32 s31, s30, 9
    s_sub_u32 s31, s4, s31           ; pg
    s_lshr_b32 s5, s3, 1
    s_mul_i32 s5, s5, 9
    s_add_u32 s5, s5, s31
    s_lshl_b32 s64, s5, 8
    s_mul_i32 s7, s30, {192*9216}
    s_add_u32 s64, s64, s7           ; W1 src
    s_mul_i32 s65, s5, {4*36*1024}
    s_mul_i32 s7, s30, {12*1024}
    s_add_u32 s65, s65, s7
    s_and_b32 s7, s3, 1
    s_mul_i32 s7, s7, {WSZ}
    s_add_u32 s65, s65, s7           ; W1F dst
    s_mul_i32 s5, s3, 18
    s_add_u32 s5, s5, s4
    s_sub_u32 s5, s5, 14
    s_mul_i32 s66, s5, {32*1152}     ; W2 src
    s_lshr_b32 s7, s3, 1             ; sp
    s_mul_i32 s30, s7, 36
    s_sub_u32 s5, s5, s30            ; r
    s_mul_i32 s30, s5, 57
    s_lshr_b32 s30, s30, 9           ; r/9
    s_mul_i32 s30, s30, 35
    s_lshl_b32 s5, s5, 2
    s_sub_u32 s5, s5, s30            ; pos
    s_mul_i32 s67, s5, 9216
    s_mul_i32 s30, s7, {4*36*9216}
    s_add_u32 s67, s67, s30
    s_add_u32 s67, s67, {W2F-W1F}    ; W2F dst
    s_and_b32 s7, s7, 1
    s_mul_i32 s7, s7, 5120
    s_add_u32 s68, s67, s7
    s_sub_u32 s69, s67, s7
    s_add_u32 s69, s69, 5120
    v_lshrrev_b32 v7, 3, v1
    v_and_b32 v10, 7, v1
    v_lshlrev_b32 v10, 4, v10
    v_mad_u32_u24 v11, v7, 36, 0
    v_lshl_add_u32 v12, v11, 8, v10  ; W1 voffset
    v_lshl_add_u32 v13, v11, 5, v10  ; W2 voffset
    v_add_u32 v10, {LH}, v10
    v_mov_b32 v11, 192
    v_mad_u32_u24 v14, v7, v11, v10
    v_mov_b32 v16, 160
    v_mad_u32_u24 v15, v7, v16, v10
    v_lshrrev_b32 v7, 1, v4
    v_and_b32 v4, 1, v4
    v_lshlrev_b32 v6, 3, v6
    v_add_u32 v6, {LH}, v6
    v_lshl_add_u32 v10, v7, 4, v5
    v_lshl_add_u32 v10, v4, 2, v10
    v_mad_u32_u24 v17, v10, v16, v6
    v_add_u32 v18, v17, v6
    v_subrev_u32 v18, {LH}, v18
    v_lshl_add_u32 v10, v7, 3, v5
    v_lshl_add_u32 v6, v4, 5, v6
    v_mad_u32_u24 v16, v10, v11, v6
    v_lshlrev_b32 v4, 7, v1
    s_waitcnt vmcnt(0)
    ds_write_b32 v8, v9""")
    k.stamp(1)
    def job(ng, srd, vo, sb, src, pitch, wa, ra, troff, db, dst):
        vm = VM(k); D = 9
        def ld(g):
            for i in range(4):
                k(f"s_add_u32 s30, s{sb}, {src(g, i)}")
                vm.issue(f"buffer_load_dwordx4 {v(24+16*(g%D)+4*i,4)}, v{vo}, {sr(srd)}, s30 offen nt", g)
        for g in range(min(D, ng)): ld(g)
        for g in range(ng):
            b = 24+16*(g%D)
            vm.wait(g)
            for i in range(4): k(f"ds_write_b128 v{wa}, {v(b+4*i,4)} offset:{8*pitch*i}")
            k("s_waitcnt lgkmcnt(0)")
            for q in range(4):
                for h in range(2): k(f"ds_read_b64_tr_b16 {v(b+4*q+2*h,2)}, v{ra(g)} offset:{troff(g, q, h)}")
            for q in range(4):
                k(f"s_add_u32 s30, s{db(g)}, {dst(g, q)}\ns_waitcnt lgkmcnt({6-2*q})")
                vm.issue(f"buffer_store_dwordx4 {v(b+4*q,4)}, v2, s[56:59], s30 offen sc1")
            if g+D < ng: ld(g+D)
    k("s_cmp_ge_u32 s4, 27\ns_cbranch_scc1 K2_H2")
    job(12, 32, 12, 64, lambda g, i: (g//2*32+8*i)*9216 + 128*(g%2), 192, 14, lambda g: 16, lambda g, q, h: (16*(q//2)+4*h)*192 + 64*(q%2),
        lambda g: 65, lambda g, q: ((2*(g%2)+q%2)*36 + 2*(g//2)+q//2)*1024)
    k("K2_H2:\ns_cmp_lt_u32 s4, 14\ns_cbranch_scc1 K2_H3")
    job(9, 40, 13, 66, lambda g, i: 8*i*1152 + 128*g, 160, 15, lambda g: 18 if g < 8 else 17,
        lambda g, q, h: 8*h*160 + (64*(q//2)+8*(q%2) if g < 8 else 32*q),
        lambda g: 68+g%2 if g < 8 else 67, lambda g, q: (g//2*36*9 + q if g < 8 else q*36*9 + 4)*1024)
    k("K2_H3:")
    k.stamp(2)
    vm = VM(k)
    touch(k, vm, 44, 61, 4, 3, 23); touch(k, vm, 48, 62, 4, 2, 23); touch(k, vm, 52, 63, 4, 1, 23)
    k(f"""s_cmp_ge_u32 s4, 27
    s_cbranch_scc1 K2_H4
    s_waitcnt vmcnt(6)
    s_mov_b32 exec_hi, 0xffff""")
    for t in range(4):
        for h in range(2): k(f"s_add_u32 s30, s65, {t*36*1024+h*6144}\nbuffer_load_dword v23, v4, s[56:59], s30 offen")
    k("s_mov_b32 exec_hi, -1\nK2_H4:")
    k.srd(32, 28, 256*36864, PART); k.srd(40, 28, 256*128, FLG)
    k("""s_mul_i32 s30, s2, 36864
    s_lshl_b32 s31, s2, 7
    v_mov_b32 v28, -1
    v_mov_b32 v29, -1
    v_mov_b32 v30, -1
    v_mov_b32 v31, -1
    v_mov_b32 v32, 0
    v_lshlrev_b32 v33, 20, v1
    buffer_store_dword v32, v33, s[40:43], s31 offen sc1""")
    for j in range(36):
        if j % 4 == 0 and j: k("s_add_u32 s30, s30, 4096")
        k(f"buffer_store_dwordx4 v[28:31], v2, s[32:35], s30 offen offset:{1024*(j%4)} sc1")
    code_prefetch(k, "k3_kernel", "CODE_END", 24)
    tail(k)
    return k

def KU():
    k = K("ku_kernel", 144, 64, 36864, 192)
    head(k, 144)
    k(f"""s_lshl_b32 s5, s2, 6
    v_lshrrev_b32 v2, 2, v1
    v_mul_u32_u24 v2, 9216, v2
    v_and_b32 v3, 3, v1
    v_lshl_add_u32 v2, v3, 4, v2
    v_and_b32 v3, 31, v1
    v_lshrrev_b32 v8, 5, v1
    v_lshlrev_b32 v8, 4, v8
    v_mov_b32 v9, 0x100000
    v_mov_b32 v10, {2304*2}
    v_cmp_eq_u32 vcc, 0, v3
    v_cndmask_b32 v9, v9, v10, vcc
    v_mov_b32 v10, {1728*2}
    v_cmp_eq_u32 vcc, 4, v3
    v_cndmask_b32 v9, v9, v10, vcc
    v_add_u32 v8, v8, v9
    s_waitcnt lgkmcnt(0)""")
    k.srd(32, 16, 576*9216); k.srd(36, 28, 3456*2, MODB); k.srd(44, 28, 144*512, UVF)
    vm = VM(k)
    for s in range(36):
        k(f"s_mov_b32 m0, {s*1024}")
        vm.issue(f"buffer_load_dwordx4 {v(48+4*s,4)}, v8, s[36:39], 0 offen offset:{32*s}")
        vm.issue(f"buffer_load_dwordx4 v2, s[32:35], s5 offen lds", s)
        k(f"s_add_u32 s5, s5, {16*9216}")
    tr_lane(k, 4, 5, 6)
    k(f"""v_lshrrev_b32 v7, 1, v4
    v_lshl_add_u32 v5, v7, 3, v5
    v_lshlrev_b32 v5, 6, v5
    v_and_b32 v4, 1, v4
    v_lshl_add_u32 v5, v4, 5, v5
    v_lshl_add_u32 v5, v6, 3, v5""")
    for s in range(36):
        b = 16 + 4*(s % 2)
        vm.wait(s)
        k(f"""ds_read_b64_tr_b16 {v(b,2)}, v5 offset:{1024*s}
        ds_read_b64_tr_b16 {v(b+2,2)}, v5 offset:{1024*s+256}
        s_waitcnt lgkmcnt(0)
        v_mfma_f32_32x32x16_bf16 v[32:47], {v(48+4*s,4)}, {v(b,4)}, {'0' if s==0 else 'v[32:47]'}""")
    k(f"""s_lshl_b32 s5, s2, 9
    v_lshlrev_b32 v2, 3, v1
    v_cvt_pk_bf16_f32 v9, v32, 0
    v_lshlrev_b32 v8, 16, v9
    v_sub_f32 v8, v32, v8
    v_cvt_pk_bf16_f32 v8, v32, v8
    buffer_store_dwordx2 v[8:9], v2, s[44:47], s5 offen""")
    tail(k)
    return k

def K3():
    XL = 110592; EX = XL + 12288
    k = K("k3_kernel", 256, 256, EX+24576, 224)
    head(k, 256)
    k("s_cmp_ge_u32 s2, 192\ns_cbranch_scc1 K3_U")
    OFR=16; ACC=88; PRM=136; WB=184
    k(f"""s_and_b32 s3, s2, 7
    s_lshl_b32 s3, s3, 2
    s_bfe_u32 s4, s2, 0x20003
    s_add_u32 s3, s3, s4             ; rb
    s_lshr_b32 s4, s2, 5             ; cbk
    s_and_b32 s5, s6, 1              ; tt
    s_lshr_b32 s7, s6, 1             ; kh
    s_lshl_b32 s50, s3, 1
    s_add_u32 s50, s50, s5
    s_mul_i32 s51, s50, {36*1024}
    s_lshl_b32 s30, s7, 14
    s_add_u32 s52, s51, s30
    s_lshl_b32 s30, s7, 11
    s_add_u32 s53, s51, s30
    s_add_u32 s53, s53, {32*1024}
    s_mul_i32 s54, s7, 288
    s_lshl_b32 s30, s5, 4
    s_add_u32 s54, s54, s30
    s_mul_i32 s55, s54, 192
    s_mul_i32 s54, s54, 1152
    s_mul_i32 s30, s4, 192
    s_add_u32 s54, s54, s30
    s_lshl_b32 s56, s3, 6
    s_lshl_b32 s31, s6, 4
    s_add_u32 s56, s56, s31
    s_mul_i32 s56, s56, 1152
    s_add_u32 s56, s56, s30          ; x soffset
    s_mul_i32 s57, s6, 3072
    s_mul_i32 s58, s4, 6
    s_mul_i32 s31, s7, 3
    s_add_u32 s58, s58, s31
    s_lshl_b32 s59, s58, 6
    v_lshlrev_b32 v2, 4, v1
    v_lshrrev_b32 v11, 5, v1
    v_lshlrev_b32 v12, 5, v11""")
    for n in range(192): assert (n*5462)>>16 == n//12
    for j in range(3):
        k(f"""v_add_u32 v3, {64*j}, v1
        v_mul_u32_u24 v4, 5462, v3
        v_lshrrev_b32 v4, 16, v4
        v_lshlrev_b32 v3, 4, v3
        v_mul_u32_u24 v4, {1152-192}, v4
        v_add_u32 v{8+j}, v3, v4""")
    k("s_waitcnt lgkmcnt(0)")
    k.srd(32, 28, 64*36*1024, OF); k.srd(36, 12, 576*1152); k.srd(44, 8, 2048*1152); k.srd(60, 28, 3456*4, MODF)
    vm = VM(k)
    stg = [range(0,5), range(5,10), range(10,18)]
    for st in range(3):
        for f in stg[st]:
            if f < 16:
                if f % 4 == 0 and f: k("s_add_u32 s52, s52, 4096")
                vm.issue(f"buffer_load_dwordx4 {v(OFR+4*f,4)}, v2, s[32:35], s52 offen offset:{1024*(f%4)}")
            else: vm.issue(f"buffer_load_dwordx4 {v(OFR+4*f,4)}, v2, s[32:35], s53 offen offset:{1024*(f-16)}")
        for j in range(3*st, 3*st+3):
            for p in range(3):
                k(f"s_add_u32 m0, s55, {j*6144+p*1024}")
                if p == 0 and j: k(f"s_add_u32 s54, s54, {32*1152}")
                vm.issue(f"buffer_load_dwordx4 v{8+p}, s[36:39], s54 offen lds", ("st", st))
    for p in range(3):
        k(f"s_add_u32 m0, s57, {XL+p*1024}\ns_nop 0")
        vm.issue(f"buffer_load_dwordx4 v{8+p}, s[44:47], s56 offen lds", "x")
    k(f"s_add_u32 s30, s59, {1152*4}\ns_add_u32 s31, s59, {2304*4}")
    for f in range(3):
        for h2 in range(2):
            vm.issue(f"buffer_load_dwordx4 {v(PRM+16*f+4*h2,4)}, v12, s[60:63], s30 offen offset:{64*f+16*h2}")
            vm.issue(f"buffer_load_dwordx4 {v(PRM+16*f+8+4*h2,4)}, v12, s[60:63], s31 offen offset:{64*f+16*h2}", "prm")
    T3 = int(os.environ.get("K3T", 0))
    def w2touch():
        k.srd(64, 28, WSZ, W2F)
        k(f"""s_bfe_u32 s30, s2, 0x20001
        s_mul_i32 s30, s30, {1152*1152}
        s_lshr_b32 s31, s2, 3
        s_lshl_b32 s31, s31, 2
        s_add_u32 s31, s31, s6
        s_mul_i32 s31, s31, {108*128}
        s_add_u32 s30, s30, s31
        s_add_u32 s31, s30, {54*128}
        v_lshlrev_b32 v13, 7, v1
        s_mov_b32 exec_hi, 0x3fffff""")
        vm.issue("buffer_load_dword v221, v13, s[64:67], s30 offen"); vm.issue("buffer_load_dword v220, v13, s[64:67], s31 offen")
        k("s_mov_b32 exec_hi, -1")
    if T3 == 1: w2touch()
    tr_lane(k, 4, 5, 6); pi_c(k, 6, 7)
    k(f"""v_lshl_add_u32 v5, v11, 3, v5
    v_mul_u32_u24 v5, 192, v5
    v_lshl_add_u32 v5, v6, 3, v5
    s_mul_i32 s30, s7, {288*192}
    v_add_u32 v5, s30, v5
    v_and_b32 v4, 1, v4
    s_mul_i32 s30, s7, 3
    v_add_u32 v4, s30, v4""")
    for j in range(3):
        k(f"""v_add_u32 v6, {2*j}, v4
        v_subrev_u32 v7, 6, v6
        v_min_u32 v6, v6, v7
        v_lshl_add_u32 v{8+j}, v6, 5, v5""")
    def rd(f):
        b = WB + 12*(f % 3)
        if f == 16:
            k(f"v_mul_u32_u24 v7, {64*192}, v11")
            for j in range(3): k(f"v_add_u32 v{8+j}, v7, v{8+j}")
        for j in range(3):
            for i in range(2):
                row = 18*f + 2*(f & 1) + 4*i if f < 16 else 36*(4*(f-16)+i) + 16
                k(f"ds_read_b64_tr_b16 {v(b+4*j+2*i,2)}, v{8+j} offset:{row*192}")
    first = {0: 0, 5: 1, 10: 2}
    def rds(f):
        if f in first: vm.wait(("st", first[f])); k("s_barrier"); k.stamp(1+first[f])
        if f == 0 and T3 == 2: w2touch()
        rd(f)
    rds(0); rds(1)
    for f in range(18):
        if f+2 < 18: rds(f+2)
        k(f"s_waitcnt lgkmcnt({6*min(2,17-f)})")
        b = WB + 12*(f % 3)
        for j in range(3):
            A = v(ACC+16*j,16)
            k(f"v_mfma_f32_32x32x16_bf16 {A}, {v(b+4*j,4)}, {v(OFR+4*f,4)}, {'0' if f==0 else A}")
    k(f"""s_mul_i32 s30, s6, 6144
    s_add_u32 s30, s30, {EX}
    v_add_u32 v3, s30, v2
    s_xor_b32 s31, s6, 2
    s_mul_i32 s31, s31, 6144
    s_add_u32 s31, s31, {EX}
    v_add_u32 v4, s31, v2
    v_and_b32 v5, 31, v1
    v_mul_u32_u24 v6, 192, v5
    v_lshl_add_u32 v6, v11, 4, v6
    s_mul_i32 s30, s5, {32*192}
    s_mul_i32 s31, s7, 96
    s_add_u32 s30, s30, s31
    s_add_u32 s30, s30, {XL}
    v_add_u32 v6, s30, v6""")
    for j in range(6): k(f"ds_write_b128 v3, {v(ACC+24+4*j,4)} offset:{1024*j}")
    k.srd(32, 28, 64*36*1024, X1F); k.srd(36, 28, 64*36*1024, YF); k.srd(44, 28, 64*12*256, ST2)
    k(f"""s_lshl_b32 s58, s58, 10
    s_add_u32 s58, s58, s51
    s_mul_i32 s50, s50, 12
    s_lshl_b32 s4, s4, 1
    s_add_u32 s50, s50, s4
    s_add_u32 s50, s50, s7
    s_lshl_b32 s50, s50, 8
    s_mov_b32 s31, 0xffff0000
    s_waitcnt vmcnt({vm.cnt("prm")}) lgkmcnt(0)
    s_barrier""")
    k.stamp(4)
    for j in range(6): k(f"ds_read_b128 {v(OFR+4*j,4)}, v4 offset:{1024*j}")
    for f in range(3): k(f"ds_read_b128 {v(OFR+24+4*f,4)}, v6 offset:{32*f}")
    k("s_waitcnt lgkmcnt(3)")
    for j in range(12): k(f"v_pk_add_f32 {v(ACC+2*j,2)}, {v(ACC+2*j,2)}, {v(OFR+2*j,2)}")
    k("s_waitcnt lgkmcnt(0)")
    T = OFR + 40;
    for f in range(3):
        xr = OFR+24+4*f
        for j in range(4): k(f"v_lshlrev_b32 v{T+2*j}, 16, v{xr+j}\nv_and_b32 v{T+2*j+1}, s31, v{xr+j}")
        for j in range(4): k(f"v_pk_fma_f32 {v(T+2*j,2)}, {v(ACC+8*f+2*j,2)}, {v(PRM+16*f+2*j,2)}, {v(T+2*j,2)}")
        for j in range(4): k(f"v_cvt_pk_bf16_f32 v{xr+j}, v{T+2*j}, v{T+2*j+1}")
        k(f"buffer_store_dwordx4 {v(xr,4)}, v2, s[32:35], s58 offen offset:{1024*f}")
        for j in range(4): k(f"v_lshlrev_b32 v{T+2*j}, 16, v{xr+j}\nv_and_b32 v{T+2*j+1}, s31, v{xr+j}")
        for j in range(4):
            if f == 0 and j == 0: k(f"v_pk_mul_f32 v[14:15], {v(T,2)}, {v(T,2)}\nv_mov_b32 v12, v{T}\nv_mov_b32 v13, v{T+1}")
            else: k(f"v_pk_fma_f32 v[14:15], {v(T+2*j,2)}, {v(T+2*j,2)}, v[14:15]\nv_pk_add_f32 v[12:13], v[12:13], {v(T+2*j,2)}")
        for j in range(4): k(f"v_pk_mul_f32 {v(T+2*j,2)}, {v(T+2*j,2)}, {v(PRM+16*f+8+2*j,2)}")
        for j in range(4): k(f"v_cvt_pk_bf16_f32 v{OFR+4*f+j}, v{T+2*j}, v{T+2*j+1}")
        k(f"buffer_store_dwordx4 {v(OFR+4*f,4)}, v2, s[36:39], s58 offen offset:{1024*f}")
    k(f"""v_add_f32 v12, v12, v13
    v_add_f32 v13, v14, v15
    v_mov_b32 v14, v12
    v_mov_b32 v15, v13
    v_lshlrev_b32 v5, 3, v5
    v_permlane32_swap_b32 v12, v14
    v_permlane32_swap_b32 v13, v15
    v_pk_add_f32 v[12:13], v[12:13], v[14:15]
    s_mov_b32 exec_hi, 0
    buffer_store_dwordx2 v[12:13], v5, s[44:47], s50 offen
    s_endpgm""")
    k(f"""K3_U:
    s_bfe_u32 s4, s2, 0x30003
    s_lshl_b32 s5, s6, 3
    s_add_u32 s4, s4, s5
    s_cmp_ge_u32 s4, 18
    s_cbranch_scc1 END_k3_kernel
    s_and_b32 s3, s2, 7
    s_mul_i32 s5, s3, 18
    s_add_u32 s4, s4, s5             ; tile
    s_and_b32 s3, s3, 1
    s_mul_i32 s3, s3, {WSZ}
    s_mul_i32 s5, s4, {36*1024}
    s_add_u32 s5, s5, s3
    s_lshl_b32 s4, s4, 9
    s_lshl_b32 s7, s6, 12
    s_mov_b32 m0, s7
    s_mov_b32 s30, {1728*2}
    v_lshlrev_b32 v2, 4, v1
    v_bfe_u32 v6, v1, 2, 1
    v_xor_b32 v6, 1, v6
    v_mul_u32_u24 v6, 1152, v6
    v_lshrrev_b32 v7, 5, v1
    v_lshl_add_u32 v6, v7, 4, v6
    v_add_u32 v6, s7, v6
    s_waitcnt lgkmcnt(0)""")
    k.srd(32, 28, 2*WSZ, W1F); k.srd(36, 28, 3456*2, MODB); k.srd(44, 28, 144*512, UVF)
    for j in range(3): k(f"buffer_load_dwordx4 v2, s[36:39], s30 offen offset:{1024*j} lds")
    for s_ in range(36):
        k(f"buffer_load_dwordx4 {v(64+4*s_,4)}, v2, s[32:35], s5 offen offset:{1024*(s_%4)}")
        if s_ % 4 == 3: k("s_add_u32 s5, s5, 4096")
    k("s_waitcnt vmcnt(36)")
    for s0 in range(0, 36, 4):
        b = 24 + 16*((s0//4) % 2)
        for s_ in range(4): k(f"ds_read_b128 {v(b+4*s_,4)}, v6 offset:{32*(s0+s_)}")
        k(f"s_waitcnt vmcnt({32-s0}) lgkmcnt(0)")
        for s_ in range(4): k(f"v_mfma_f32_32x32x16_bf16 v[8:23], {v(b+4*s_,4)}, {v(64+4*(s0+s_),4)}, {'0' if s0+s_==0 else 'v[8:23]'}")
    k(f"""v_lshlrev_b32 v2, 3, v1
    v_cvt_pk_bf16_f32 v5, v8, 0
    v_lshlrev_b32 v4, 16, v5
    v_sub_f32 v4, v8, v4
    v_cvt_pk_bf16_f32 v4, v8, v4
    buffer_store_dwordx2 v[4:5], v2, s[44:47], s4 offen""")
    tail(k)
    return k

def later():
    ks = [K2(), K3()]
    try:
        from km import KM
        ks += [KM()]
    except ImportError: pass
    return ks
```

```python
from lib import *
from k01 import *

class LG(VM):
    def cnt(s, tag): return min(15, s.n - s.tag[tag])

def KM():
    SL = 24576; SL2 = 36864; UVL = 4*SL2
    LB = [n % 6 * SL for n in range(15)]
    GT = [(0,1),(2,),(3,4),(5,6),(7,8)]; RAMP = [int(c, 16) for c in os.environ.get("KMRAMP", "356")]
    H0 = int(os.environ.get("KMH0", 12)); PK = int(os.environ.get("KMPK", 0)); PRIO = int(os.environ.get("KMPRIO", 0))
    S2 = [2,3,0,1]; DI = int(os.environ.get("KMDI", 4)); YR = int(os.environ.get("KMYR", 1)); D17 = int(os.environ.get("KMD17", 15))
    ORD = [(0,0),(0,1),(0,2)] + [x for t in range(9) for x in [(1,t),(2,t),(3,t)] + ([(0,t+3)] if t < 6 else [])]
    if "o" in os.environ.get("KMX", ""): ORD = [(r,t) for t in range(9) for r in range(4)]
    SW = int(os.environ.get("KMSW", 0)); STP = int(os.environ.get("KMSTP", 16))
    YU = int(os.environ.get("KMYU", 16)); ROT = int(os.environ.get("KMROT", 0)); X = os.environ.get("KMX", "")
    S4 = int(os.environ.get("KMS4", 72))
    PUB = {9: 1, 12: 3, 15: 5, 17: 7, 18: 8}
    CHK = {13: 1, 16: 3, 18: 5, 20: 7, 21: 8}
    chk = dict(CHK); okv = [-1]
    if "n" in X: PUB = {}; CHK = {}
    if "p" in X: CHK = {}
    k = K("km_kernel", 256, 512, UVL+4096, 112, na=144)
    head(k, 256)
    TB=lambda j: 48+16*(j%4)
    WB=16; UV=12; ST=80; T=8
    A0=0; L16=1; HS=2; L8=3; BX=4; NRL=6; SIG=7
    k(f"""s_and_b32 s3, s2, 1
    s_lshl_b32 s3, s3, 3
    s_lshr_b32 s4, s2, 5
    s_add_u32 s3, s3, s4             ; rb
    s_bfe_u32 s4, s2, 0x20001        ; sp
    s_bfe_u32 s5, s2, 0x20003        ; cb
    s_and_b32 s26, s6, 3
    s_cmp_{'lt' if SW else 'ge'}_u32 s6, 4
    s_cbranch_scc1 KM_LD
    s_lshl_b32 s7, s3, 2
    s_add_u32 s7, s7, s26
    s_lshl_b32 s56, s3, 2
    s_add_u32 s56, s56, s5
    s_lshl_b32 s56, s56, 2
    s_add_u32 s56, s56, s26
    s_mul_i32 s30, s7, {36*1024}     ; y base""")
    for q in range(4):
        if ROT: k(f"s_add_u32 s31, s5, {q}\ns_and_b32 s31, s31, 3\ns_mul_i32 s31, s31, 9216\ns_add_u32 s{48+q}, s30, s31")
        else: k(f"s_add_u32 s{48+q}, s30, {9216*q}")
    k(f"""s_mul_i32 s53, s7, {12*256}
    v_lshlrev_b32 v{L8}, 3, v1
    v_lshrrev_b32 v11, 5, v1         ; hf
    v_and_b32 v10, 31, v1            ; tok
    v_cmp_gt_u32 vcc, 32, v1
    v_lshlrev_b32 v{L16}, 4, v1
    s_waitcnt lgkmcnt(0)""")
    k.srd(32, 28, 64*36*1024, YF)
    if PRIO: k(f"s_setprio {PRIO}")
    vm = VM(k); lg = LG(k)
    def yld(s):
        q, r = divmod(s, 9)
        if r in (4, 8): k(f"s_add_u32 s{48+q}, s{48+q}, 4096")
        vm.issue(f"buffer_load_dwordx4 {a(4*s,4)}, v{L16}, s[32:35], s{48+q} offen offset:{1024*(r%4)}", ("y", s))
    for s in range(min(YU, STP)): yld(s)
    k.srd(36, 28, 64*12*256, ST2); k.srd(40, 28, 128*147456, HF); k.srd(44, 28, 256*36864, PART)
    k.srd(60, 28, 3456*2, MODB); k.srd(64, 24, 2048*1152); k.srd(68, 28, 64*36*1024, X1F)
    k(f"""v_mul_u32_u24 v4, {6*256}, v11
    v_lshl_add_u32 v{ST+12}, v10, 3, v4
    s_mov_b32 s16, s53""")
    def stld():
        for j in range(6): vm.issue(f"buffer_load_dwordx2 {v(ST+2*j,2)}, v{ST+12}, s[36:39], s16 offen offset:{256*j}", "st")
    if YU >= STP: stld()
    yn = [YU]
    for s in range(STP, YU): yld(s)
    k(f"""v_lshrrev_b32 v4, 4, v10
    s_mov_b32 s31, 147456
    v_mul_lo_u32 v4, v4, s31
    v_and_b32 v5, 15, v10
    v_lshl_add_u32 v4, v11, 8, v4
    v_lshl_add_u32 v{HS}, v5, 4, v4
    v_mov_b32 v{A0}, v{L16}
    v_add_u32 v{L8}, {UVL}, v{L8}
    s_mul_i32 s52, s7, {2*147456}
    s_mul_i32 s31, s4, 36864
    s_add_u32 s52, s52, s31
    s_lshr_b32 s26, s4, 1            ; u0
    s_and_b32 s27, s4, 1             ; G0
    s_mul_i32 s31, s26, 147456
    s_add_u32 s54, s52, s31
    s_sub_u32 s55, s52, s31
    s_add_u32 s55, s55, 147456       ; u slot 1
    s_lshl_b32 s31, s5, 10
    s_add_u32 s52, s52, s31
    s_mul_i32 s56, s56, 36864        ; P0
    s_lshl_b32 s57, s5, 1
    s_add_u32 s57, s57, s27
    s_lshl_b32 s58, s57, 12
    s_add_u32 s58, s58, s30
    s_lshl_b32 s31, s26, 8
    s_add_u32 s58, s58, s31
    s_add_u32 s59, s30, s31
    s_lshl_b32 s31, s5, 10
    s_add_u32 s59, s59, s31
    s_add_u32 s59, s59, {32*1024}
    s_lshl_b32 s57, s57, 7
    s_lshl_b32 s53, s5, 5
    s_add_u32 s53, s53, 1024
    s_lshl_b32 s7, s7, 1
    s_add_u32 s7, s7, s26
    s_mul_i32 s7, s7, {16*1152}""")
    for r in range(4): k(f"s_add_u32 s31, s5, {r}\ns_and_b32 s31, s31, 3\ns_lshl_b32 s31, s31, 10\ns_add_u32 s{8+r}, s54, s31\ns_add_u32 s{12+r}, s55, s31")
    cur = [0]
    stat = [("vw", "st")] + f"""v_pk_add_f32 {v(ST,2)}, {v(ST,2)}, {v(ST+2,2)}
    v_pk_add_f32 {v(ST+4,2)}, {v(ST+4,2)}, {v(ST+6,2)}
    v_pk_add_f32 {v(ST+8,2)}, {v(ST+8,2)}, {v(ST+10,2)}
    v_pk_add_f32 {v(ST,2)}, {v(ST,2)}, {v(ST+4,2)}
    v_pk_add_f32 {v(ST,2)}, {v(ST,2)}, {v(ST+8,2)}
    v_mov_b32 v{ST+2}, v{ST}
    v_mov_b32 v{ST+3}, v{ST+1}
    v_permlane32_swap_b32 v{ST}, v{ST+2}
    v_permlane32_swap_b32 v{ST+1}, v{ST+3}
    v_pk_add_f32 {v(ST,2)}, {v(ST,2)}, {v(ST+2,2)}
    v_mul_f32 v{ST}, {f2u(-1/576.)}, v{ST}
    v_mul_f32 v{ST+1}, {f2u(1/576.)}, v{ST+1}
    v_fma_f32 v{ST+1}, -v{ST}, v{ST}, v{ST+1}
    v_max_f32 v{ST+1}, 0, v{ST+1}
    v_add_f32 v{ST+1}, {f2u(1e-5)}, v{ST+1}
    v_sqrt_f32 v{SIG}, v{ST+1}
    v_rsq_f32 v{NRL}, v{ST+1}
    v_cndmask_b32 v{ST}, v{SIG}, v{ST}, vcc
    v_mul_f32 v{NRL}, {f2u(-LOG2E)}, v{NRL}
    v_cvt_pk_bf16_f32 v{BX}, v{ST}, v{ST}
    v_lshlrev_b32 v{ST+1}, 16, v{BX}
    v_sub_f32 v{ST+1}, v{ST}, v{ST+1}
    v_cvt_pk_bf16_f32 v{BX+1}, v{ST+1}, 0""".split("\n")
    steps = [(g, s) for g in range(5) for s in range(36)]
    def nrd(i): return len(GT[steps[i][0]])
    def rd(i):
        g, s = steps[i]; n = 3*g + s//12; b = WB + 8*(i % 4); L = []
        if s % 12 == 0:
            L.append(("bar", n))
            nb = LB[n] // (2*SL) * 2*SL if not 0 <= LB[n]-cur[0] <= 65536-SL else cur[0]
            if nb != cur[0]: L.append(f"v_add_u32 v{A0}, {nb}, v{L16}"); cur[0] = nb
        if s == 29:
            for t in range(nrd(i)): L.append(("ds", f"ds_read_b64 {v(UV+2*t,2)}, v{L8} offset:{512*(GT[g][t]%8)}", None))
        for t in range(nrd(i)): L.append(("ds", f"ds_read_b128 {v(b+4*t,4)}, v{A0} offset:{LB[n]-cur[0]+1024*(s%12)+12288*t}", ("w", i)))
        return L
    def silu_ops(tl):
        acc = TB(tl); ops = []
        for q in range(2):
            pk = acc + 8*q
            for hh in range(2):
                r0 = acc + 8*q + 4*hh; t0 = T
                if PK:
                    for j in (0, 2): ops.append(f"v_pk_mul_f32 {v(t0+j,2)}, {v(r0+j,2)}, {v(NRL,2)} op_sel_hi:[1,0]")
                else:
                    for j in range(4): ops.append(f"v_mul_f32 v{t0+j}, v{NRL}, v{r0+j}")
                for j in range(4): ops.append(f"v_exp_f32 v{t0+j}, v{t0+j}")
                if PK:
                    for j in (0, 2): ops.append(f"v_pk_fma_f32 {v(t0+j,2)}, {v(t0+j,2)}, {v(NRL,2)}, {v(NRL,2)} op_sel:[0,1,1]")
                else:
                    for j in range(4): ops.append(f"v_fma_f32 v{t0+j}, v{t0+j}, v{SIG}, v{SIG}")
                for j in range(4): ops.append(f"v_rcp_f32 v{t0+j}, v{t0+j}")
                if PK:
                    for j in (0, 2): ops.append(f"v_pk_mul_f32 {v(t0+j,2)}, {v(r0+j,2)}, {v(t0+j,2)}")
                else:
                    for j in range(4): ops.append(f"v_mul_f32 v{t0+j}, v{r0+j}, v{t0+j}")
                for j in range(2): ops.append(f"v_cvt_pk_bf16_f32 v{pk+2*hh+j}, v{t0+2*j}, v{t0+2*j+1}")
            ops.append(("vm", f"buffer_store_dwordx4 {v(pk,4)}, v{HS}, s[40:43], s52 offen offset:{512*q} sc1", ("hs", tl)))
            if q: ops.append("s_add_u32 s52, s52, 4096")
        return ops
    def cost(op): return 8 if isinstance(op, str) and op.startswith(("v_exp", "v_rcp")) else 4
    STB = {int(x): j+1 for j, x in enumerate(os.environ.get("KMST", "0,3,15").split(","))}
    def emit(op):
        if isinstance(op, tuple):
            if op[0] == "bar":
                if op[1] in PUB: vm.wait(("hs", PUB[op[1]]))
                if op[1] in chk: okv[0] = chk[op[1]]
                k("s_barrier")
                if op[1] in STB: k.stamp(STB[op[1]])
            elif op[0] == "vm": vm.issue(op[1], op[2])
            elif op[0] == "ds": lg.issue(op[1], op[2])
            elif op[0] == "vw": vm.wait(op[1])
        else: k(op)
    HB = 0; NH = 9; W2 = 72; NW = 8; AD = 12
    AC2 = [16+4*j for j in range(8)] + [64+4*j for j in range(10)]
    A2 = {}
    for j, ut in enumerate([(0,0),(0,1),(0,2),(0,3),(0,5),(0,6),(0,7),(0,8),(1,0),(1,1),(1,2),(1,3),(1,5),(1,6),(1,7),(1,8),(0,4),(1,4)]): A2[ut] = AC2[j]
    def hld(s, t):
        r, tl = ORD[s]
        if r: assert tl <= okv[0] or 'n' in X, (s, tl)
        elif t == 0: vm.wait(("hs", tl))
        k(f"s_add_u32 s17, s{8+4*t+r}, {4096*tl}")
        vm.issue(f"buffer_load_dwordx4 {a(HB+8*(s%NH)+4*t,4)}, v{L16}, s[40:43], s17 offen sc1", ("h", s))
    TM = int(os.environ.get("KMTM", 28))
    units = [(s, t, (0, 1)) for s in range(TM) for t in range(9)]
    for ts, us in [((5,6),(0,1)), ((7,8,4),(0,1)), ((0,1,2,3),(1,)), ((0,1,2,3),(0,))]:
        units += [(s, t, us) for s in range(TM, 36) for t in ts]
    seen = set()
    def rd2(i):
        s, t, _ = units[i]; n = s // 4; L = []
        if n not in seen: L.append(("bar", 15+n)); seen.add(n)
        L.append(("ds", f"ds_read_b128 {a(W2+4*(i%NW),4)}, v{AD+S2[n%4]} offset:{9216*(s%4)+1024*t}", ("w2", i)))
        return L
    LA = 3; LA2 = 7; WG = 3
    for i in range(LA):
        for op in rd(i): emit(op)
    ops = []
    for i, (g, s) in enumerate(steps):
        nt = len(GT[g]); b = WB + 8*(i % 4)
        if s == 0:
            assert not ops
            ops = sum((silu_ops(x-2) for x in GT[g]), []) if g else list(stat); tot = sum(cost(o) for o in ops); done = 0
            s0, s1 = (1, 35) if g else (STP+1, 28)
        R = rd(i+LA) if i+LA < len(steps) else []
        if g == 4 and s >= 33:
            if s == 33: R += [f"v_add_u32 v{AD+j}, {SL2*j}, v{L16}" for j in range(4)]
            for j in {33: (0, 1), 34: (2, 3, 4), 35: (5, 6)}[s]: R += rd2(j)
        if g == 0: vm.wait(("y", s), f" lgkmcnt({lg.cnt(('w', i))})")
        else: k(f"s_waitcnt lgkmcnt({lg.cnt(('w', i))})")
        for t in range(nt):
            A = v(TB(GT[g][t]),16)
            k(f"v_mfma_f32_32x32x16_bf16 {A}, {v(b+4*t,4)}, {a(4*s,4)}, {A if s else '0'}")
            nr = len(R) - 1 if (t == 0 and nt == 2 and len(R) > 1) else len(R)
            for _ in range(nr): emit(R.pop(0))
            if g == 0:
                for _ in range((YR+t)//2):
                    if yn[0] < 36: yld(yn[0]); yn[0] += 1
                    if yn[0] == STP and YU < STP: stld()
            if g == 4 and H0 <= s < H0+16 and t == 1: hld((s-H0)//2, (s-H0) % 2)
            if ops and s >= s0:
                tgt = tot * ((s-s0)*nt+t+1) / ((s1-s0+1)*nt)
                while ops and done + cost(ops[0])/2 <= tgt: done += cost(ops[0]); emit(ops.pop(0))
                if s == s1 and t == nt-1:
                    while ops: emit(ops.pop(0))
        if s == 30:
            for t in range(nt): k(f"v_mfma_f32_32x32x8_bf16 {v(TB(GT[g][t]),16)}, {v(UV+2*t,2)}, {v(BX,2)}, {v(TB(GT[g][t]),16)}")
    assert not ops
    ops = silu_ops(7) + silu_ops(8); tot = sum(cost(o) for o in ops); done = 0
    XR = 48; GR = 56; XM = 104; GM = 106; VX = 108
    pre = f"""v_bfe_u32 v8, v{L16}, 8, 2
    v_and_b32 v9, 0xf0, v{L16}
    v_lshl_add_u32 v{VX}, v8, 9, v9
    v_lshlrev_b32 v{VX+1}, 4, v8
    v_and_b32 v10, 2, v8
    v_lshl_add_u32 v10, v10, 8, v9
    v_and_b32 v11, 1, v8
    v_lshl_add_u32 v10, v11, 3, v10
    v_lshlrev_b32 v11, 3, v8
    v_mul_u32_u24 v9, 72, v9
    v_add_u32 v{VX+2}, v9, v{VX+1}
    v_add_u32 v{VX+3}, v9, v11
    s_add_u32 s30, s57, {2880*2}
    s_add_u32 s31, s53, {2880*2}""".split("\n") + [
      ("vm", f"buffer_load_dwordx4 {v(XR,4)}, v{VX}, s[68:71], s58 offen", None),
      ("vm", f"buffer_load_dwordx4 {v(XR+4,4)}, v{VX}, s[68:71], s58 offen offset:2048", None),
      ("vm", f"buffer_load_dwordx2 {v(XM,2)}, v10, s[68:71], s59 offen", None),
      ("vm", f"buffer_load_dwordx4 {v(GR,4)}, v{VX+1}, s[60:63], s30 offen", None),
      ("vm", f"buffer_load_dwordx4 {v(GR+4,4)}, v{VX+1}, s[60:63], s30 offen offset:64", None),
      ("vm", f"buffer_load_dwordx2 {v(GM,2)}, v11, s[60:63], s31 offen", "pre")] + f"""s_mul_i32 s30, s4, 9216
    s_add_u32 s30, s30, s56
    s_mul_i32 s31, s26, 4608
    s_add_u32 s56, s56, s31          ; P0 + u0*4608
    s_add_u32 s48, s30, s31          ; own block, u0
    s_sub_u32 s49, s30, s31
    s_add_u32 s49, s49, 4608         ; own block, u1
    s_lshl_b32 s27, s27, 11
    s_add_u32 s50, s49, s27          ; u1 Gslot0
    s_sub_u32 s51, s49, s27
    s_add_u32 s51, s51, 2048         ; u1 Gslot1
    s_sub_u32 s52, s48, s27
    s_add_u32 s52, s52, 2048         ; u0 Gslot1
    s_add_u32 s48, s48, 4096
    s_add_u32 s49, s49, 4096
    s_xor_b32 s30, s4, 1
    s_mul_i32 s30, s30, 9216
    s_add_u32 s32, s56, s30
    s_xor_b32 s30, s4, 2
    s_mul_i32 s30, s30, 9216
    s_add_u32 s33, s56, s30
    s_xor_b32 s30, s4, 3
    s_mul_i32 s30, s30, 9216
    s_add_u32 s34, s56, s30
    s_add_u32 s36, s32, 4096
    s_add_u32 s37, s33, 4096
    s_add_u32 s38, s34, 4096
    s_add_u32 s32, s32, s27
    s_add_u32 s33, s33, s27
    s_add_u32 s34, s34, s27
    s_add_u32 s57, s57, s7
    s_add_u32 s53, s53, s7
    s_mov_b32 s31, 0xffff0000
    s_mov_b32 s35, 0x100000
    v_lshrrev_b32 v{L8}, 1, v{L16}""".split("\n")
    NU = len(units); HT = [int(c) for c in os.environ.get("KMHT", "36")]
    M0 = A2[(0,4)]; M1 = A2[(1,4)]
    def pack(r, n, d=None):
        d = r if d is None else d
        return [f"v_cvt_pk_bf16_f32 v{d+j}, v{r+2*j}, v{r+2*j+1}" for j in range(n//2)] + [f"v_min_u32 v{d+j}, -2, v{d+j}" for j in range(n//2)]
    def send(u, t, so, off): return pack(A2[(u,t)], 8) + [("vm", f"buffer_store_dwordx4 {v(A2[(u,t)],4)}, v{L16}, s[44:47], s{so} offen offset:{off} sc1", None)]
    own = [(16+2*j, XR+j, GR+j, 32+2*j) for j in range(8)] + [(M0+2*j, XM+j, GM+j, 100+2*j) for j in range(2)]
    fin = {(6,1): send(0,5,52,0) + send(1,5,51,0),
           (4,1): send(0,7,52,1024) + send(1,7,51,1024) + [f"v_accvgpr_read_b32 v{M0+j}, a{104+j}" for j in range(8)] + pack(M0, 4, 8)
                  + [("vm", f"buffer_store_dwordx2 v[8:9], v{L8}, s[44:47], s48 offen sc1", None)] + pack(M1, 4)
                  + [("vm", f"buffer_store_dwordx2 {v(M1,2)}, v{L8}, s[44:47], s49 offen sc1", None)],
           (3,1): send(1,0,50,0) + send(1,2,50,1024) + [("vw", "pre")]
                  + [x for (o, xx, gq, gf) in own for x in (f"v_lshlrev_b32 v{gf}, 16, v{gq}", f"v_and_b32 v{gf+1}, s31, v{gq}")]}
    hw = -1; tl = []; dly = 0
    for i, (s, t, us) in enumerate(units):
        if i % WG == 0:
            c = lg.cnt(("w2", min(i+WG, NU)-1)); ms = max(x[0] for x in units[i:i+WG])
            if ms > hw: vm.wait(("h", ms), f" lgkmcnt({c})"); hw = ms
            else: k(f"s_waitcnt lgkmcnt({c})")
        for u in us:
            A = v(A2[(u, t)],4) if t != 4 else a(104+4*u,4)
            k(f"v_mfma_f32_16x16x32_bf16 {A}, {a(W2+4*(i%NW),4)}, {a(HB+8*(s%NH)+4*u,4)}, {'0' if s==0 else A}")
            if i+LA2 < NU and u == us[0]:
                for op in rd2(i+LA2): emit(op)
            if u == 1 and t in HT and s+8 < 36: hld(s+8, HT.index(t))
            if u == 1 and ops and i >= 1:
                while ops and done + cost(ops[0])/2 <= tot * i / S4: done += cost(ops[0]); emit(ops.pop(0))
            if u == 1 and s >= 20 and pre and t not in HT: emit(pre.pop(0))
            dly -= 1
            if dly <= 0:
                for _ in range(2):
                    if tl: emit(tl.pop(0))
            if s == 35 and (t, u) in fin:
                assert not pre
                if not tl: dly = 2
                tl += fin[(t, u)]
    while tl: emit(tl.pop(0))
    assert not ops and not pre
    if len(STB) < 4: k.stamp(4)
    for (o, x, gq, gf) in own[::-1]:
        k(f"""v_lshlrev_b32 v10, 16, v{x}
        v_and_b32 v11, s31, v{x}
        v_pk_fma_f32 {v(o,2)}, {v(o,2)}, {v(gf,2)}, v[10:11]""")
    PD = 64
    if "d" not in X: k("s_waitcnt vmcnt(0)")
    k("KM_RETRY:")
    for d in range(3):
        for p in range(2): k(f"buffer_load_dwordx4 {v(PD+8*d+4*p,4)}, v{L16}, s[44:47], s{32+d} offen offset:{1024*p} sc1")
        k(f"buffer_load_dwordx2 {v(PD+24+2*d,2)}, v{L8}, s[44:47], s{36+d} offen sc1")
    k(f"s_waitcnt vmcnt(6)\nv_max3_u32 v8, v{PD}, v{PD+1}, v{PD+2}\nv_max3_u32 v9, v{PD+3}, v{PD+4}, v{PD+5}")
    k(f"v_max3_u32 v8, v8, v{PD+6}, v{PD+7}\nv_max3_u32 v9, v9, v{PD+24}, v{PD+25}")
    for d in (1, 2):
        k(f"s_waitcnt vmcnt({6-3*d})")
        for j in range(4): k(f"v_max3_u32 v{8+j%2}, v{8+j%2}, v{PD+8*d+2*j}, v{PD+8*d+2*j+1}")
        k(f"v_max3_u32 v8, v8, v{PD+24+2*d}, v{PD+25+2*d}")
    k(f"""v_max_u32 v8, v8, v9
    v_cmp_eq_u32 vcc, -1, v8
    s_nop 1
    s_cbranch_vccz KM_FIN
    s_sub_u32 s35, s35, 1
    s_cbranch_scc1 KM_FIN
    s_sleep 3
    s_branch KM_RETRY
    KM_FIN:""")
    for j, (o, x, gq, gf) in enumerate(own):
        P = [PD+8*d+j if j < 8 else PD+24+2*d+j-8 for d in range(3)]
        t0 = 48 + 6*(j % 2)
        for d in range(3): k(f"v_lshlrev_b32 v{t0+2*d}, 16, v{P[d]}\nv_and_b32 v{t0+2*d+1}, s31, v{P[d]}")
        k(f"""v_pk_add_f32 {v(t0,2)}, {v(t0,2)}, {v(t0+2,2)}
        v_pk_add_f32 {v(t0,2)}, {v(t0,2)}, {v(t0+4,2)}
        v_pk_fma_f32 {v(o,2)}, {v(t0,2)}, {v(gf,2)}, {v(o,2)}
        v_cvt_pk_bf16_f32 v{P[0]}, v{o}, v{o+1}""")
        if j in (3, 7): k(f"buffer_store_dwordx4 {v(PD+j-3,4)}, v{VX+2}, s[64:67], s57 offen offset:{16*(j-3)}")
    k(f"""s_cmp_eq_u32 s27, 0
    s_cselect_b32 exec_lo, -1, 0
    s_cselect_b32 exec_hi, 0, -1
    buffer_store_dwordx2 {v(PD+24,2)}, v{VX+3}, s[64:67], s53 offen
    s_endpgm""")
    k(f"""KM_LD:
    s_mov_b32 s7, s26
    s_lshl_b32 s3, s4, 2
    s_add_u32 s3, s3, s5             ; fb
    s_and_b32 s30, s2, 1
    s_mul_i32 s30, s30, {WSZ}
    s_mul_i32 s52, s3, {9*36*1024}
    s_add_u32 s56, s52, s30
    s_mul_i32 s58, s7, 3072          ; lds wave base
    s_mul_i32 s30, s5, {3 if ROT else 0}
    s_add_u32 s30, s30, s7""")
    for st in range(3):
        k(f"""s_add_u32 s31, s30, {4*st}
        s_sub_u32 s{60+st}, s31, 12
        s_cselect_b32 s31, s31, s{60+st}
        s_mul_i32 s31, s31, 3072
        s_add_u32 s{60+st}, s31, s56""")
    k(f"""v_lshlrev_b32 v8, 4, v1
    s_waitcnt lgkmcnt(0)""")
    k.srd(36, 28, 2*WSZ, W1F)
    vm = VM(k)
    def dma(n):
        if n >= 15:
            m = n - 15
            C = sum((ORD[4*m+w][1]*4 + ORD[4*m+w][0]) << (8*w) for w in range(4))
            k(f"""s_lshr_b32 s30, {C}, s59
            s_add_u32 s31, s30, s27
            s_and_b32 s31, s31, 3
            s_and_b32 s30, s30, 0xfc
            s_add_u32 s30, s30, s31
            s_mul_i32 s30, s30, 9216
            s_add_u32 s30, s30, s52""")
            for j in range(9):
                if j % 3 == 0: k(f"s_add_u32 m0, s53, {S2[m%4]*SL2+1024*j}\ns_add_u32 s31, s30, {1024*j}")
                PC = int(os.environ.get("KMPC", 99))
                if j >= 1 and PC < 63: k(f"s_waitcnt vmcnt({PC})")
                vm.issue(f"buffer_load_dwordx4 v8, s[44:47], s31 offen offset:{1024*(j%3)} lds", ("w", n))
            return
        g, st = divmod(n, 3)
        for t in range(len(GT[g])):
            k(f"s_add_u32 m0, s58, {LB[n]+12288*t}\ns_add_u32 s31, s{60+st}, {GT[g][t]*36*1024}")
            for j in range(3): vm.issue(f"buffer_load_dwordx4 v8, s[36:39], s31 offen offset:{1024*j} lds", ("w", n))
    PRE = int(os.environ.get("KMPRE", 2))
    dma(0); dma(1)
    k.srd(44, 28, WSZ, W2F); k.srd(40, 28, 144*512, UVF); k.srd(48, 28, 256*128, FLG)
    k(f"""s_mul_i32 s30, s3, {9*512}
    s_lshl_b32 s31, s7, 8
    s_add_u32 s64, s30, s31
    s_add_u32 s64, s64, 4096
    s_add_u32 s65, s31, {UVL}
    s_lshl_b32 s31, s7, 10
    s_add_u32 s30, s30, s31
    s_add_u32 m0, s31, {UVL}
    v_lshlrev_b32 v9, 2, v1
    v_lshlrev_b32 v10, 7, v1""")
    vm.issue("buffer_load_dwordx4 v8, s[40:43], s30 offen lds")
    for n in range(2, PRE): dma(n)
    k(f"""s_mul_i32 s4, s4, {1152*1152}
    s_mov_b32 s27, s5
    s_lshl_b32 s59, s7, 3
    s_lshr_b32 s5, s2, 3
    s_lshl_b32 s5, s5, 2
    s_add_u32 s5, s5, s7
    s_mul_i32 s5, s5, {81*128}
    s_add_u32 s4, s4, s5
    s_mul_i32 s53, s7, 9216
    s_lshl_b32 s54, s2, 7
    s_andn2_b32 s55, s54, {3<<10}
    v_and_b32 v13, 3, v1
    v_lshlrev_b32 v13, 10, v13
    v_lshlrev_b32 v14, 20, v0
    v_and_b32 v14, 0xff00000, v14
    s_mov_b32 s57, 0x100000""")
    nxt = PRE
    for n in range(24):
        if n in CHK:
            vm.wait(("f", n))
            k(f"""KM_P{n}:
            v_cmp_gt_u32 vcc, {CHK[n]+1}, v{16+n%2}
            s_nop 1
            s_cbranch_vccz KM_Q{n}
            s_sub_u32 s57, s57, 1
            s_cbranch_scc1 KM_Q{n}
            s_sleep 2
            buffer_load_dword v{16+n%2}, v13, s[48:51], s55 offen sc1
            s_waitcnt vmcnt(0)
            s_branch KM_P{n}
            KM_Q{n}:""")
        vm.wait(("w", n)); k("s_barrier")
        if n+2 in CHK: vm.issue(f"buffer_load_dword v{16+n%2}, v13, s[48:51], s55 offen sc1", ("f", n+2))
        if n in PUB:
            k(f"v_mov_b32 v15, {PUB[n]+1}")
            vm.issue("buffer_store_dword v15, v14, s[48:51], s54 offen sc1")
        if "l" in X and n == int(os.environ.get("KML", 11)):
            k("s_waitcnt vmcnt(0)"); k.stamp(1)
            k("buffer_store_dword v15, v14, s[48:51], s54 offen offset:64 sc1\ns_waitcnt vmcnt(0)"); k.stamp(2)
            k("buffer_load_dword v12, v13, s[48:51], s55 offen sc1\ns_waitcnt vmcnt(0)"); k.stamp(3)
            k("buffer_load_dword v12, v13, s[48:51], s55 offen sc1\ns_waitcnt vmcnt(0)"); k.stamp(4)
        if n == 4: k("s_mov_b32 m0, s65"); vm.issue("buffer_load_dword v9, s[40:43], s64 offen lds")
        while nxt <= min(n+DI, 14, RAMP[n] if n < len(RAMP) else 99): dma(nxt); nxt += 1
        if n in (12, 13): dma(n+3)
        if n == D17: dma(17)
        if 16 <= n <= 21: dma(n+2)
        if n == int(os.environ.get("KMT", 99)): touch(k, vm, 44, 4, 10, 2, 11)
    tail(k)
    return k
```

```python
from lib import *
MODP=0x0; MODF=0x10000; MODB=0x14000; ST1=0x20000; FLG=0x30000; WQF=0x100000; QIMG=0x400000; KVIMG=0x900000
OF=0xE00000; X1F=0x1100000; YF=0x1400000; ST2=0x1700000; UVF=0x1780000; HF=0x1800000; PART=0x2A00000
HIMG=155648; TIMG=2432
W1F=0x3400000; W2F=0x3F00000; WOF=0x4500000; WSZ=5308416
LOG2E=1.4426950408889634
import struct
def f2u(x): return struct.unpack("<I", struct.pack("<f", x))[0]
for n in range(576): assert (n*1821)>>16 == n//36

def head(k, ngrid):
    if STAMP: k("s_memrealtime s[78:79]\ns_memtime s[80:81]\ns_mov_b32 s82, 0\ns_mov_b32 s84, 0\ns_mov_b32 s86, 0\ns_mov_b32 s88, 0")
    k(f"""s_load_dwordx16 s[8:23], s[0:1], 0
    s_load_dwordx2 s[24:25], s[0:1], 64
    s_load_dwordx2 s[28:29], s[0:1], 80
    s_cmp_ge_u32 s2, {ngrid}
    s_cbranch_scc1 END_{k.name}
    v_lshrrev_b32 v2, 6, v0
    v_and_b32 v1, 63, v0
    v_readfirstlane_b32 s6, v2""")
def tail(k):
    k(f"END_{k.name}:\ns_endpgm")
def code_prefetch(k, lab0, lab1, vt, slice_sreg=None):
    k(f"""s_getpc_b64 s[40:41]
    PC_{k.name}:
    s_add_u32 s40, s40, {lab0}-PC_{k.name}
    s_addc_u32 s41, s41, 0
    s_lshr_b32 s42, s2, 3
    s_lshl_b32 s42, s42, 12
    v_lshlrev_b32 {v(vt)}, 6, v1
    v_add_u32 {v(vt)}, s42, {v(vt)}
    v_mov_b32 {v(vt+1)}, {lab1}-{lab0}
    v_cmp_lt_u32 vcc, {v(vt)}, {v(vt+1)}
    v_mov_b32 {v(vt+3)}, s41
    v_add_co_u32 {v(vt+2)}, s[44:45], s40, {v(vt)}
    v_addc_co_u32 {v(vt+3)}, s[44:45], 0, {v(vt+3)}, s[44:45]
    s_and_saveexec_b64 s[42:43], vcc
    s_cbranch_execz PFX_{k.name}
    global_load_dword {v(vt)}, {v(vt+2,2)}, off
    PFX_{k.name}:
    s_mov_b64 exec, s[42:43]""")

def tr_lane(k, vG, vr, vc):
    k(f"""v_lshrrev_b32 {v(vG)}, 4, v1
    v_bfe_u32 {v(vr)}, v1, 2, 2
    v_and_b32 {v(vc)}, 3, v1""")

class VM:
    def __init__(s, k): s.k = k; s.n = 0; s.tag = {}
    def issue(s, text, tag=None):
        s.k(text); s.n += 1
        if tag is not None: s.tag[tag] = s.n
    def cnt(s, tag): return min(63, s.n - s.tag[tag])
    def wait(s, tag, extra=""): s.k(f"s_waitcnt vmcnt({s.cnt(tag)}){extra}")

def touch(k, vm, srd, soff, vidx, n, vd):
    for i in range(n):
        vm.issue(f"buffer_load_dword v{vd}, v{vidx}, {sr(srd)}, s{soff} offen")
        if i < n-1: k(f"s_add_u32 s{soff}, s{soff}, 8192")

def K0():
    RED = 4*9216+4*512
    k = K("k0_kernel", 256, 448, RED+512, 64)
    head(k, 256)
    k("""s_cmp_ge_u32 s6, 6
    s_cbranch_scc1 K0_F
    s_cmp_ge_u32 s6, 4
    s_cbranch_scc1 K0_P
    s_cmp_ge_u32 s2, 128
    s_cbranch_scc1 K0_L
    s_cmp_ge_u32 s2, 108
    s_cbranch_scc1 K0_W""")
    k(f"""s_mul_i32 s5, s6, {144*6912}
    s_lshl_b32 s7, s2, 6
    s_add_u32 s5, s5, s7             ; soffset
    s_mul_i32 s7, s6, 9216
    v_lshrrev_b32 v2, 2, v1
    v_mul_u32_u24 v2, 6912, v2
    v_and_b32 v3, 3, v1
    v_lshl_add_u32 v2, v3, 4, v2
    v_lshlrev_b32 v3, 1, v1
    s_mul_i32 s30, s6, 288
    s_waitcnt lgkmcnt(0)""")
    k.srd(32, 22, 576*6912); k.srd(36, 20, 1152)
    for j in range(3): k(f"buffer_load_ushort v{8+j}, v3, s[36:39], s30 offen offset:{128*j}")
    for s in range(9):
        k(f"""s_add_u32 m0, s7, {s*1024}
        s_add_u32 s31, s5, {s*16*6912}
        buffer_load_dwordx4 v2, s[32:35], s31 offen lds""")
    k.srd(44, 28, MODB-MODF+3456*2, MODF)
    tr_lane(k, 4, 5, 6)
    k(f"""v_lshrrev_b32 v7, 1, v4
    v_lshl_add_u32 v5, v7, 3, v5
    v_lshlrev_b32 v5, 6, v5
    v_and_b32 v4, 1, v4
    v_lshl_add_u32 v5, v4, 5, v5
    v_lshl_add_u32 v5, v6, 3, v5
    v_add_u32 v5, s7, v5
    s_lshl_b32 s30, s6, 9
    s_add_u32 s30, s30, {4*9216}
    v_add_u32 v4, s30, v3
    v_lshlrev_b32 v7, 4, v7
    v_add_u32 v7, s30, v7
    s_mov_b32 s31, {f2u(-LOG2E)}
    s_waitcnt vmcnt(9)""")
    for j in range(3): k(f"v_lshlrev_b32 v{8+j}, 16, v{8+j}\nv_mul_f32 v{12+j}, s31, v{8+j}")
    for j in range(3): k(f"v_exp_f32 v{12+j}, v{12+j}")
    for j in range(3): k(f"v_add_f32 v{12+j}, 1.0, v{12+j}")
    for j in range(3): k(f"v_rcp_f32 v{12+j}, v{12+j}")
    for j in range(3): k(f"v_mul_f32 v{12+j}, v{8+j}, v{12+j}")
    for j in range(3): k(f"v_cvt_pk_bf16_f32 v{12+j}, v{12+j}, v{12+j}")
    for j in range(3): k(f"ds_write_b16 v4, v{12+j} offset:{128*j}")
    k(f"""v_and_b32 v2, 31, v1
    v_lshlrev_b32 v6, 4, v2
    s_lshl_b32 s30, s6, 2
    v_add_u32 v4, s30, v6
    s_sub_u32 s3, s2, 18
    s_cmp_lt_u32 s3, 18
    s_cselect_b32 s4, 1.0, 0
    s_sub_u32 s3, s2, 72
    s_cmp_lt_u32 s3, 18
    s_cselect_b32 s4, 1.0, s4
    s_lshl_b32 s3, s2, 7
    s_lshl_b32 s5, s2, 6
    s_add_u32 s5, s5, {MODB-MODF}
    v_lshlrev_b32 v2, 2, v1""")
    for s in range(9):
        b = 16 + 8*(s % 2)
        k(f"""s_waitcnt vmcnt({8-s})
        ds_read_b128 {v(b,4)}, v7 offset:{32*s}
        ds_read_b64_tr_b16 {v(b+4,2)}, v5 offset:{1024*s}
        ds_read_b64_tr_b16 {v(b+6,2)}, v5 offset:{1024*s+256}
        s_waitcnt lgkmcnt(0)
        v_mfma_f32_32x32x16_bf16 v[32:47], {v(b,4)}, {v(b+4,4)}, {'0' if s==0 else 'v[32:47]'}""")
    k(f"""ds_write_b32 v4, v32 offset:{RED}
    s_waitcnt lgkmcnt(0)
    s_barrier
    s_cmp_lg_u32 s6, 0
    s_cbranch_scc1 END_k0_kernel
    ds_read_b128 v[8:11], v6 offset:{RED}
    s_mov_b32 exec_hi, 0
    s_waitcnt lgkmcnt(0)
    v_add_f32 v8, v8, v9
    v_add_f32 v10, v10, v11
    v_add_f32 v8, v8, v10
    v_cvt_pk_bf16_f32 v8, v8, v8
    v_lshlrev_b32 v8, 16, v8
    v_add_f32 v8, s4, v8
    v_cvt_pk_bf16_f32 v9, v8, v8
    v_lshlrev_b32 v8, 16, v9
    buffer_store_short v9, v3, s[44:47], s5 offen
    buffer_store_dword v8, v2, s[44:47], s3 offen
    s_endpgm""")
    k(f"""K0_L:
    s_and_b32 s3, s2, 7
    s_lshl_b32 s3, s3, 4
    s_bfe_u32 s4, s2, 0x40003
    s_add_u32 s3, s3, s4             ; blk16
    s_lshl_b32 s3, s3, 2
    s_add_u32 s3, s3, s6             ; blk4
    s_mul_i32 s4, s3, {4*1152}
    v_lshrrev_b32 v2, 4, v1
    v_and_b32 v3, 15, v1
    v_mul_u32_u24 v4, 1152, v2
    v_lshl_add_u32 v4, v3, 3, v4
    s_waitcnt lgkmcnt(0)""")
    k.srd(32, 8, 2048*1152); k.srd(36, 28, 2048*8, ST1)
    for i in range(9): k(f"buffer_load_dwordx2 {v(8+2*i,2)}, v4, s[32:35], s4 offen offset:{128*i}")
    k("s_mov_b32 s30, 0xffff0000")
    for i in range(18):
        if i % 2 == 0: k(f"s_waitcnt vmcnt({8-i//2})")
        k(f"v_lshlrev_b32 v{28+2*i}, 16, v{8+i}\nv_and_b32 v{29+2*i}, s30, v{8+i}")
        if i == 1: k(f"v_pk_add_f32 v[6:7], v[28:29], v[30:31]")
        elif i > 1: k(f"v_pk_add_f32 v[6:7], v[6:7], {v(28+2*i,2)}")
    def red16(r):
        for sh in (8, 4, 2, 1): k(f"v_add_f32_dpp v{r}, v{r}, v{r} row_ror:{sh} row_mask:0xf bank_mask:0xf")
    k("v_add_f32 v6, v6, v7"); red16(6)
    k(f"v_mul_f32 v6, {f2u(-1/576.)}, v6")
    for i in range(18):
        k(f"v_pk_add_f32 {v(28+2*i,2)}, {v(28+2*i,2)}, v[6:7] op_sel_hi:[1,0]")
    for i in range(18):
        if i == 0: k("v_pk_mul_f32 v[8:9], v[28:29], v[28:29]")
        else: k(f"v_pk_fma_f32 v[8:9], {v(28+2*i,2)}, {v(28+2*i,2)}, v[8:9]")
    k("v_add_f32 v8, v8, v9"); red16(8)
    k(f"""v_mov_b32 v9, {f2u(1e-5)}
    v_fmac_f32 v9, {f2u(1/576.)}, v8
    v_rsq_f32 v8, v9
    v_lshlrev_b32 v2, 3, v2
    v_mul_f32 v9, v6, v8
    s_lshl_b32 s3, s3, 5
    v_cmp_eq_u32 vcc, 0, v3
    s_and_saveexec_b64 s[30:31], vcc
    buffer_store_dwordx2 v[8:9], v2, s[36:39], s3 offen
    s_endpgm""")
    k(f"""K0_P:
    s_sub_u32 s30, s6, 4
    s_lshl_b32 s31, s30, 7
    s_add_u32 s31, s31, s2
    s_sub_u32 s31, s31, 128
    s_cmp_lt_u32 s2, 128
    s_cbranch_scc1 END_k0_kernel
    s_cmp_ge_u32 s31, 216
    s_cbranch_scc1 END_k0_kernel
    s_mul_i32 s30, s30, 9216
    s_mul_i32 s3, s31, 1821
    s_lshr_b32 s3, s3, 16            ; cgp
    s_mul_i32 s4, s3, 36
    s_sub_u32 s4, s31, s4            ; kstep
    s_mul_i32 s5, s4, {16*3456}
    s_mul_i32 s7, s3, 576
    s_add_u32 s5, s5, s7
    s_waitcnt lgkmcnt(0)""")
    k.srd(32, 10, 576*3456); k.srd(36, 28, 54*36*1024, WQF)
    for j in range(9):
        k(f"""v_add_u32 v2, {64*j}, v1
        v_mul_u32_u24 v3, 1821, v2
        v_lshrrev_b32 v3, 16, v3
        v_lshlrev_b32 v2, 4, v2
        v_mul_u32_u24 v3, {3456-576}, v3
        v_add_u32 v2, v2, v3
        s_add_u32 m0, s30, {1024*j}
        buffer_load_dwordx4 v2, s[32:35], s5 offen lds""")
    tr_lane(k, 4, 5, 6)
    k(f"""v_lshrrev_b32 v7, 1, v4
    v_lshl_add_u32 v5, v7, 3, v5
    v_mul_u32_u24 v5, 576, v5
    v_add_u32 v5, s30, v5
    v_and_b32 v4, 1, v4
    v_lshl_add_u32 v7, v4, 2, v6
    v_mul_u32_u24 v7, 72, v7
    v_add_u32 v7, v7, v5
    v_mul_u32_u24 v4, 40, v4
    v_add_u32 v5, v5, v4
    v_and_b32 v4, 1, v6
    v_lshrrev_b32 v6, 1, v6
    v_lshl_add_u32 v6, v4, 1, v6     ; pi(c)
    v_lshl_add_u32 v5, v6, 3, v5
    v_lshlrev_b32 v2, 4, v1
    s_lshr_b32 s5, s3, 1
    s_mul_i32 s5, s5, 18
    s_and_b32 s3, s3, 1
    s_add_u32 s7, s5, s3
    s_add_u32 s7, s7, 16
    s_lshl_b32 s3, s3, 3
    s_add_u32 s5, s5, s3
    s_mul_i32 s5, s5, 36
    s_add_u32 s5, s5, s4
    s_lshl_b32 s5, s5, 10
    s_mul_i32 s7, s7, 36
    s_add_u32 s7, s7, s4
    s_lshl_b32 s7, s7, 10
    s_waitcnt vmcnt(0)""")
    for p in range(8):
        k(f"ds_read_b64_tr_b16 {v(8+4*p,2)}, v5 offset:{72*p}\nds_read_b64_tr_b16 {v(10+4*p,2)}, v5 offset:{72*p+2304}")
        if p == 5: k("s_waitcnt lgkmcnt(4)")
    k(f"ds_read_b64_tr_b16 v[40:41], v7 offset:32\nds_read_b64_tr_b16 v[42:43], v7 offset:{32+2304}\ns_waitcnt lgkmcnt(0)")
    for p in range(8):
        k(f"buffer_store_dwordx4 {v(8+4*p,4)}, v2, s[36:39], s5 offen\ns_add_u32 s5, s5, {36*1024}")
    k("buffer_store_dwordx4 v[40:43], v2, s[36:39], s7 offen\ns_endpgm")
    for n in range(576): assert (n*3641)>>16 == n//18
    k(f"""K0_W:
    s_sub_u32 s3, s2, 108
    s_cmp_ge_u32 s3, 18
    s_cbranch_scc1 END_k0_kernel
    s_mul_i32 s30, s6, 9216
    s_mul_i32 s7, s6, 18
    s_add_u32 s7, s7, s3
    s_mul_i32 s7, s7, 9216           ; dst
    s_mul_i32 s5, s3, {36*1152}
    s_mul_i32 s4, s3, {288*1152}
    s_sub_u32 s4, s4, {(16*288-16)*1152}
    s_cmp_ge_u32 s3, 16
    s_cselect_b32 s5, s4, s5
    s_cselect_b32 s3, 2, 4
    s_cselect_b32 s4, 32, 4
    s_mul_i32 s4, s4, 1152
    s_mul_i32 s31, s6, 288
    s_add_u32 s5, s5, s31
    s_waitcnt lgkmcnt(0)""")
    k.srd(32, 12, 576*1152); k.srd(36, 28, 72*9216, WOF)
    for j in range(9):
        k(f"""v_add_u32 v2, {64*j}, v1
        v_mul_u32_u24 v3, 3641, v2
        v_lshrrev_b32 v3, 16, v3
        v_lshlrev_b32 v2, 4, v2
        v_lshrrev_b32 v4, s3, v3
        v_mul_u32_u24 v3, {1152-288}, v3
        v_mul_u32_u24 v4, s4, v4
        v_add3_u32 v2, v2, v3, v4
        s_add_u32 m0, s30, {1024*j}
        buffer_load_dwordx4 v2, s[32:35], s5 offen lds""")
    tr_lane(k, 4, 5, 6)
    k(f"""v_lshl_add_u32 v5, v4, 3, v5
    v_mul_u32_u24 v5, 288, v5
    v_lshl_add_u32 v5, v6, 3, v5
    v_add_u32 v5, s30, v5
    v_lshlrev_b32 v2, 4, v1
    s_waitcnt vmcnt(0)""")
    for t in range(9):
        k(f"ds_read_b64_tr_b16 {v(8+4*t,2)}, v5 offset:{32*t}\nds_read_b64_tr_b16 {v(10+4*t,2)}, v5 offset:{32*t+4*288}")
        if t == 5: k("s_waitcnt lgkmcnt(4)")
    k("s_waitcnt lgkmcnt(0)")
    for t in range(9):
        if t in (4, 8): k("s_add_u32 s7, s7, 4096")
        k(f"buffer_store_dwordx4 {v(8+4*t,4)}, v2, s[36:39], s7 offen offset:{1024*(t%4)}")
    k("s_endpgm")
    k("K0_F:")
    code_prefetch(k, "k1_kernel", "CODE_END", 4)
    k(f"""s_and_b32 s3, s2, 7
    s_xor_b32 s3, s3, 1
    s_mul_i32 s3, s3, {256*1152}
    s_lshr_b32 s4, s2, 3
    s_mul_i32 s4, s4, {72*128}
    s_add_u32 s3, s3, s4
    v_lshlrev_b32 v8, 7, v1
    s_waitcnt lgkmcnt(0)""")
    k.srd(32, 8, 2048*1152)
    k("""buffer_load_dword v9, v8, s[32:35], s3 offen
    s_mov_b64 exec, 0xff
    s_add_u32 s3, s3, 8192
    buffer_load_dword v10, v8, s[32:35], s3 offen""")
    tail(k)
    return k

def bf16_round(k, regs, tmp):
    for i in range(0, len(regs), 2):
        k(f"v_cvt_pk_bf16_f32 v{tmp+i//2}, v{regs[i]}, v{regs[i+1]}")
    for i in range(0, len(regs), 2):
        k(f"v_lshlrev_b32 v{regs[i]}, 16, v{tmp+i//2}\nv_and_b32 v{regs[i+1]}, 0xffff0000, v{tmp+i//2}")

def K1():
    k = K("k1_kernel", 256, 512, 72*1040, 256)
    head(k, 256)
    X=28; W=64; ACC=208; PA=[8, 240]; PR=224
    SC = " sc1" if int(os.environ.get("K1SC", 1)) else ""
    W0 = int(os.environ.get("K1W0", 0)); WC = [int(c) for c in os.environ.get("K1WC", "000000006")]; ROT = int(os.environ.get("K1ROT", 1))
    k(f"""s_bfe_u32 s4, s2, 0x20001
    s_lshl_b32 s4, s4, 3
    s_lshr_b32 s5, s2, 5
    s_add_u32 s4, s4, s5             ; tb
    s_lshl_b32 s5, s4, 3
    s_add_u32 s5, s5, s6
    s_lshl_b32 s7, s5, 6
    s_add_u32 s7, s7, {ST1-MODB}
    s_mul_i32 s5, s5, {8*1152}
    v_lshrrev_b32 v3, 3, v1          ; t
    v_and_b32 v4, 7, v1              ; cg
    v_lshlrev_b32 v2, 4, v4
    v_mul_u32_u24 v5, 1152, v3
    v_add_u32 v5, v2, v5
    v_lshlrev_b32 v6, 3, v3
    v_lshlrev_b32 v7, 4, v1
    s_add_u32 s31, s5, {4*1152}
    s_waitcnt lgkmcnt(0)""")
    k.srd(32, 28, ST1-MODB+2048*8, MODB); k.srd(44, 8, 2048*1152)
    vm = VM(k)
    k(f"s_buffer_load_dwordx16 s[8:23], s[32:35], s7")
    vm.issue(f"buffer_load_dwordx4 {v(PR,4)}, v7, s[32:35], 0 offen")
    vm.issue(f"buffer_load_dwordx4 {v(PR+4,4)}, v7, s[32:35], 0 offen offset:1152", "p0")
    for i in range(8): vm.issue(f"buffer_load_dwordx4 {v(X+4*i,4)}, v7, s[44:47], {'s5' if i < 4 else 's31'} offen offset:{1152*(i%4)}", ("x", i))
    vm.issue(f"buffer_load_dwordx4 {v(PR+8,4)}, v2, s[32:35], 0 offen offset:1024")
    vm.issue(f"buffer_load_dwordx4 {v(PR+12,4)}, v2, s[32:35], 0 offen offset:{1024+1152}")
    vm.issue("buffer_load_dwordx2 v[24:25], v6, s[32:35], s7 offen")
    vm.issue(f"buffer_load_dwordx4 {v(X+32,4)}, v5, s[44:47], s5 offen offset:1024", ("x", 8))
    k(f"""s_and_b32 s3, s2, 1
    s_lshl_b32 s3, s3, 2
    s_bfe_u32 s30, s2, 0x20003
    s_add_u32 s3, s3, s30            ; fb
    s_mul_i32 s3, s3, 7
    s_add_u32 s3, s3, s6
    s_cmp_eq_u32 s6, 7
    s_cselect_b32 s3, 60, s3
    s_mul_i32 s30, s3, {36*1024}""")
    k.srd(48, 28, 54*36*1024, WQF); k.srd(52, 28, KVIMG-QIMG+32*HIMG, QIMG)
    k(f"s_and_b32 s5, s4, {3 if ROT else 0}")
    for q in range(4):
        k(f"""s_add_u32 s7, s5, {q}
        s_and_b32 s7, s7, 3
        s_mul_i32 s{56+q}, s7, 9216
        s_add_u32 s{56+q}, s{56+q}, s30
        s_mul_i32 s{60+q}, s7, {9*2080}""")
    wn = [0]
    def wld(n):
        for _ in range(n):
            s = wn[0]
            if s >= 36: return
            wn[0] += 1; q, r = divmod(s, 9)
            if r in (4, 8): k(f"s_add_u32 s{56+q}, s{56+q}, 4096")
            vm.issue(f"buffer_load_dwordx4 {v(W+4*s,4)}, v7, s[48:51], s{56+q} offen offset:{1024*(r%4)}", ("w", s))
    wld(W0)
    k(f"""s_lshl_b32 s31, s6, 7
    v_mul_u32_u24 v6, 1040, v1
    v_add_u32 v6, s31, v6
    v_mul_u32_u24 v5, 1040, v4
    v_lshl_add_u32 v5, v3, 4, v5
    s_add_u32 s31, s31, {64*1040}
    v_add_u32 v5, s31, v5
    s_mov_b32 s31, 0xffff0000""")
    def unp(d, r, n):
        for j in range(n): k(f"v_lshlrev_b32 v{d+2*j}, 16, v{r+j}\nv_and_b32 v{d+2*j+1}, s31, v{r+j}")
    vm.wait("p0"); k.stamp(1)
    unp(PA[0], PR, 8)
    T = ACC
    for i in range(9):
        vm.wait(("x", i), " lgkmcnt(0)" if i == 0 else "")
        b = PA[i // 8]
        if i == 8: unp(PA[1], PR+8, 8)
        unp(T, X+4*i, 4)
        so = f"s[{8+2*i}:{9+2*i}]" if i < 8 else "v[24:25]"
        for j in range(4): k(f"v_pk_fma_f32 {v(T+2*j,2)}, {v(T+2*j,2)}, {so}, {so} op_sel:[0,0,1] op_sel_hi:[1,0,1]")
        for j in range(4): k(f"v_pk_fma_f32 {v(T+2*j,2)}, {v(T+2*j,2)}, {v(b+8+2*j,2)}, {v(b+2*j,2)}")
        for j in range(4): k(f"v_cvt_pk_bf16_f32 v{X+4*i+j}, v{T+2*j}, v{T+2*j+1}")
        k(f"ds_write_b128 v6, {v(X+4*i,4)} offset:{16*i}" if i < 8 else f"ds_write_b128 v5, {v(X+4*i,4)}")
        wld(WC[i])
    k(f"""v_lshrrev_b32 v3, 5, v1          ; hf
    v_and_b32 v4, 31, v1             ; tok
    v_mul_u32_u24 v5, 1040, v3
    v_lshl_add_u32 v5, v4, 4, v5
    v_add_u32 v8, s60, v5
    v_add_u32 v9, s61, v5
    v_add_u32 v10, s62, v5
    v_add_u32 v11, s63, v5
    s_waitcnt lgkmcnt(0)
    s_barrier
    s_cmp_ge_u32 s3, 54
    s_cbranch_scc1 K1_PF""")
    def hrd(s):
        b = X + 8*(s % 4)
        for tt in range(2): k(f"ds_read_b128 {v(b+4*tt,4)}, v{8+s//9} offset:{2080*(s%9)+512*tt}")
    k.stamp(2)
    for s in range(3): hrd(s)
    for s in range(36):
        if s+3 < 36: hrd(s+3)
        vm.wait(("w", s), f" lgkmcnt({2*min(3,35-s)})")
        b = X + 8*(s % 4)
        for tt in range(2):
            A = v(ACC+16*tt,16)
            k(f"v_mfma_f32_32x32x16_bf16 {A}, {v(W+4*s,4)}, {v(b+4*tt,4)}, {'0' if s==0 else A}")
            if tt == 0: wld(1)
    k.stamp(3)
    k(f"""s_cmp_lt_u32 s3, 18
    s_cselect_b32 s31, {f2u(18**-0.5*LOG2E)}, 1.0
    s_cselect_b32 s30, 0, {KVIMG-QIMG}
    s_mul_i32 s5, s4, {2*TIMG}
    s_add_u32 s30, s30, s5
    s_mul_i32 s5, s3, {1821*2}
    s_lshr_b32 s5, s5, 16            ; section
    s_mul_i32 s7, s5, 18
    s_sub_u32 s7, s3, s7             ; idx
    v_lshrrev_b32 v8, 4, v4
    v_and_b32 v9, 15, v4
    v_mul_u32_u24 v8, 640, v8
    v_add_u32 v8, 1024, v8
    s_cmp_ge_u32 s7, 16
    s_cbranch_scc1 K1_HI
    s_mul_i32 s7, s7, {2*HIMG}
    s_add_u32 s30, s30, s7
    s_cmp_eq_u32 s5, 2
    s_cselect_b64 vcc, -1, 0
    v_lshl_add_u32 v8, v9, 5, v8
    v_lshl_add_u32 v8, v3, 4, v8
    v_lshlrev_b32 v9, 4, v1
    v_cndmask_b32 v8, v9, v8, vcc
    s_add_u32 s7, s30, {HIMG}""")
    for n in range(54): assert (n*3642)>>16 == n//18
    for r in range(32): k(f"v_mul_f32 v{ACC+r}, s31, v{ACC+r}")
    for q in range(4):
        for j in range(4): k(f"v_cvt_pk_bf16_f32 v{X+4*q+j}, v{ACC+8*q+2*j}, v{ACC+8*q+2*j+1}")
        k(f"buffer_store_dwordx4 {v(X+4*q,4)}, v8, s[52:55], {'s30' if q%2==0 else 's7'} offen offset:{TIMG*(q//2)}{SC}")
    k("s_endpgm")
    k(f"""K1_HI:
    s_sub_u32 s7, s7, 16
    s_mul_i32 s7, s7, {16*HIMG}
    s_add_u32 s30, s30, s7
    s_mov_b32 s7, {2*HIMG}
    v_mul_lo_u32 v10, v3, s7
    v_lshl_add_u32 v8, v9, 3, v8
    v_add_u32 v8, v8, v10
    v_lshl_add_u32 v9, v4, 2, v10""")
    for r in range(32): k(f"v_mul_f32 v{ACC+r}, s31, v{ACC+r}")
    for q in range(16):
        k(f"v_cvt_pk_bf16_f32 v{X+2*q}, v{ACC+2*q}, v{ACC+2*q+1}\nv_mov_b32 v{X+2*q+1}, 0x3f803f80")
    k("s_cmp_eq_u32 s5, 2\ns_cbranch_scc1 K1_HIV")
    def histores(isv):
        for j in range(4):
            for par in range(2):
                k(f"s_add_u32 s7, s30, {(4*j+par)*HIMG + (0 if isv else 2304)}")
                for tt in range(2):
                    r = X + 2*(8*tt+2*j+par)
                    if isv: k(f"buffer_store_dwordx2 {v(r,2)}, v8, s[52:55], s7 offen offset:{512+TIMG*tt}")
                    else: k(f"buffer_store_dword v{r}, v9, s[52:55], s7 offen offset:{TIMG*tt}")
        k("s_endpgm")
    histores(False)
    k("K1_HIV:"); histores(True)
    k(f"""K1_PF:
    s_cmp_lg_u32 s6, 7
    s_cbranch_scc1 END_k1_kernel
    s_mul_i32 s30, s2, 9216""")
    k.srd(32, 28, 64*36*1024, OF)
    for r in range(4): k(f"v_mov_b32 v{8+r}, -1")
    for j in range(9):
        if j in (4, 8): k("s_add_u32 s30, s30, 4096")
        k(f"buffer_store_dwordx4 v[8:11], v7, s[32:35], s30 offen offset:{1024*(j%4)} sc1")
    tail(k)
    return k
```

```python
from lib import *
from k01 import *

def pi_c(k, vc, vt):
    k(f"v_and_b32 {v(vt)}, 1, {v(vc)}\nv_lshrrev_b32 {v(vc)}, 1, {v(vc)}\nv_lshl_add_u32 {v(vc)}, {v(vt)}, 1, {v(vc)}")

FKV = 1542; FGO = 1550; FUV = 1558
PI = 592; KQ = 32*PI; STL = 3*KQ
def tsetup(k):
    k.srd(52, 28, 72*9216, WOF); k.srd(64, 8, 2048*1152); k.srd(40, 28, 3456*2, MODB)
    k.srd(32, 28, YF-X1F+64*36*1024, X1F); k.srd(36, 28, 64*4*256, ST2)
    k(f"""s_min_u32 s58, s6, 8             ; role
    s_mul_i32 s50, s58, 11
    s_lshr_b32 s50, s50, 5           ; kq
    s_mul_i32 s51, s50, 3
    s_sub_u32 s51, s58, s51          ; cs
    s_bfe_u32 s56, s2, 0x20003       ; cg
    s_mul_i32 s57, s56, 3
    s_add_u32 s57, s57, s50
    s_mul_i32 s57, s57, {6*9216}
    s_mul_i32 s68, s51, 3072
    s_add_u32 s57, s57, s68
    s_and_b32 s70, s2, 7
    s_lshl_b32 s70, s70, 3
    s_lshr_b32 s75, s2, 5
    s_add_u32 s70, s70, s75
    s_mul_i32 s68, s56, 9
    s_add_u32 s68, s68, s58
    s_lshl_b32 s71, s68, 5
    s_mul_i32 s59, s70, 36864
    s_add_u32 s62, s59, s71          ; x soffset
    s_add_u32 s63, s71, {1152*2}
    s_add_u32 s71, s71, {2304*2}
    s_buffer_load_dwordx8 s[8:15], s[40:43], s63
    s_buffer_load_dwordx8 s[16:23], s[40:43], s71
    s_lshl_b32 s68, s68, 10
    s_add_u32 s68, s68, s59          ; x1 soffset
    s_add_u32 s69, s68, {YF-X1F}
    s_mul_i32 s72, s50, 12288
    s_add_u32 s59, s59, s72
    s_add_u32 s60, s59, 4096
    s_add_u32 s61, s59, 8192
    s_lshl_b32 s70, s70, 2
    s_add_u32 s70, s70, s56
    s_lshl_b32 s70, s70, 8
    s_mul_i32 s76, s50, {KQ}
    s_mul_i32 s77, s51, 192
    s_add_u32 s76, s76, s77
    s_lshl_b32 s77, s58, 6
    s_mov_b32 s72, 0x100000
    s_mov_b32 s73, 63
    s_mov_b32 s74, 0xffff0000
    v_lshrrev_b32 v5, 4, v1
    v_and_b32 v7, 15, v1
    v_lshlrev_b32 v5, 9, v5
    v_lshl_add_u32 v6, v7, 2, v5
    v_lshl_add_u32 v5, v7, 4, v5
    v_mov_b32 v7, 0""")
def xld(k):
    k(f"""v_lshrrev_b32 v164, 5, v1
    v_mul_u32_u24 v4, 288, v3
    v_lshl_add_u32 v4, v164, 4, v4
    buffer_load_dwordx4 v[164:167], v4, s[64:67], s62 offen""")
def ldspoll(k, lab, addr, sl):
    k(f"""{lab}:
    ds_read_u16 v4, v7 offset:{addr}
    s_waitcnt lgkmcnt(0)
    v_readfirstlane_b32 s26, v4
    s_cmp_eq_u32 s26, 0
    s_cbranch_scc1 {lab}_X
    s_sleep {sl}
    s_branch {lab}
    {lab}_X:""")
def k23tail(k, WO):
    OB = 16; AC = 64; XR = 164; GA = 88; CB = 12
    SL = int(os.environ.get("K2SL", 3))
    k("K2_T:")
    B1 = int(os.environ.get("K2B1", 1))
    if not B1: ldspoll(k, "K2_G", FGO, 2)
    k("K2_T2:")
    if B1: k("s_barrier")
    if int(os.environ.get("K2S0", 0)): k(f"s_sleep {os.environ['K2S0']}")
    k("\ns_cmp_eq_u32 s50, 2\ns_cbranch_scc1 K2_LB")
    for var in "AB":
        def lds(i):
            if var == "B" and i >= 4:
                return [f"buffer_load_dword v{OB+8*i+4*T+r}, v6, s[44:47], s61 offen offset:{2048*(i-4)+128*r+64*T} sc1" for T in range(2) for r in range(4)]
            return [f"buffer_load_dwordx4 {v(OB+8*i+4*T,4)}, v5, s[44:47], s{59+i//2} offen offset:{2048*(i%2)+256*T} sc1" for T in range(2)]
        k(f"K2_L{var}:")
        for i in range(6): k("\n".join(lds(i)).replace(" sc1", os.environ.get("K2R1", "")))
        k(f"""v_lshrrev_b32 v4, 5, v1
        v_lshlrev_b32 v4, 4, v4          ; hf*16
        v_and_b32 v3, 31, v1
        v_mul_u32_u24 v7, {PI}, v3
        v_lshl_add_u32 v7, v4, 1, v7
        v_add_u32 v7, s77, v7
        v_lshrrev_b32 v8, 4, v1
        v_and_b32 v9, 15, v1
        v_mul_u32_u24 v11, {PI}, v9
        v_lshl_add_u32 v11, v8, 4, v11
        v_add_u32 v11, s76, v11""")
        for r in range(24): k(f"v_mov_b32 v{AC+r}, 0")
        for h in range(2):
            for j in range(4): k(f"v_mov_b32 v{GA+j}, s{8+4*h+j}\nv_mov_b32 v{CB+j}, s{16+4*h+j}")
            k(f"s_mov_b32 exec_lo, {-h}")
        for i in range(6):
            b = OB+8*i
            k(f"""K2_C{var}{i}:
            s_bitcmp0_b32 s73, {i}
            s_cbranch_scc1 K2_C{var}{i+1}
            s_waitcnt vmcnt({sum(len(lds(x)) for x in range(i+1, 6))})
            v_max3_u32 v9, v{b}, v{b+1}, v{b+2}
            v_max3_u32 v10, v{b+3}, v{b+4}, v{b+5}
            v_max3_u32 v9, v9, v{b+6}, v{b+7}
            v_max_u32 v9, v9, v10
            v_cmp_eq_u32 vcc, -1, v9
            s_nop 1
            s_cbranch_vccnz K2_C{var}{i+1}
            s_bitset0_b32 s73, {i}""")
            for T in range(2):
                for j in range(3):
                    A = v(AC+12*T+4*j,4)
                    k(f"v_mfma_f32_16x16x32_bf16 {A}, {v(WO+12*i+4*j,4)}, {v(b+4*T,4)}, {A}")
        k(f"K2_C{var}6:")
        if STAMP: k(f"s_cmp_lg_u32 s72, 0x100000\ns_cbranch_scc1 K2_D{var}"); k.stamp(2); k(f"s_bcnt1_i32_b32 s27, s73\nK2_D{var}:")
        k(f"""s_cmp_eq_u32 s73, 0
        s_cbranch_scc1 K2_E
        s_sub_u32 s72, s72, 1
        s_cbranch_scc1 K2_E
        s_sleep {SL}""")
        for i in range(6):
            k(f"s_bitcmp0_b32 s73, {i}\ns_cbranch_scc1 K2_R{var}{i}")
            k("\n".join(lds(i)))
            k(f"K2_R{var}{i}:")
        k(f"s_waitcnt vmcnt(0)\ns_branch K2_C{var}0")
    k("K2_E:")
    k.stamp(3)
    if STAMP: k("s_sub_u32 s88, 0x100001, s72\ns_mul_i32 s88, s88, 10\ns_add_u32 s88, s88, s27\ns_add_u32 s88, s88, s80")
    k("s_nop 4" if B1 else "s_nop 3\ns_barrier")
    for T in range(2):
        for j in range(3): k(f"ds_write_b128 v11, {v(AC+12*T+4*j,4)} offset:{16*PI*T+64*j}")
    X_ = 40; G_ = 48; C_ = 56
    for d, r in ((X_, XR), (G_, GA), (C_, CB)):
        for j in range(4): k(f"v_lshlrev_b32 v{d+2*j}, 16, v{r+j}\nv_and_b32 v{d+2*j+1}, s74, v{r+j}")
    k(f"""v_lshlrev_b32 v5, 3, v3
    v_lshlrev_b32 v4, 3, v1
    s_lshl_b32 s30, s58, 9
    v_add_u32 v6, s30, v4
    s_waitcnt lgkmcnt(0)
    s_barrier""")
    for q in range(3):
        for h in range(2): k(f"ds_read_b128 {v(OB+8*q+4*h,4)}, v7 offset:{KQ*q+16*h}")
    k("s_waitcnt lgkmcnt(2)")
    for j in range(4): k(f"v_pk_add_f32 {v(OB+2*j,2)}, {v(OB+2*j,2)}, {v(OB+8+2*j,2)}")
    k("s_waitcnt lgkmcnt(0)")
    for j in range(4): k(f"v_pk_add_f32 {v(OB+2*j,2)}, {v(OB+2*j,2)}, {v(OB+16+2*j,2)}")
    for j in range(4): k(f"v_pk_fma_f32 {v(X_+2*j,2)}, {v(OB+2*j,2)}, {v(G_+2*j,2)}, {v(X_+2*j,2)}")
    for j in range(4): k(f"v_cvt_pk_bf16_f32 v{XR+j}, v{X_+2*j}, v{X_+2*j+1}")
    for j in range(4): k(f"v_lshlrev_b32 v{X_+2*j}, 16, v{XR+j}\nv_and_b32 v{X_+2*j+1}, s74, v{XR+j}")
    for j in range(4): k(f"v_pk_mul_f32 {v(C_+2*j,2)}, {v(X_+2*j,2)}, {v(C_+2*j,2)}")
    for j in range(4): k(f"v_cvt_pk_bf16_f32 v{CB+j}, v{C_+2*j}, v{C_+2*j+1}")
    k(f"""buffer_store_dwordx4 {v(CB,4)}, v2, s[32:35], s69 offen sc1
    v_pk_add_f32 v[16:17], {v(X_,2)}, {v(X_+2,2)}
    v_pk_mul_f32 v[18:19], {v(X_,2)}, {v(X_,2)}
    v_pk_add_f32 v[16:17], v[16:17], {v(X_+4,2)}
    v_pk_fma_f32 v[18:19], {v(X_+2,2)}, {v(X_+2,2)}, v[18:19]
    v_pk_add_f32 v[16:17], v[16:17], {v(X_+6,2)}
    v_pk_fma_f32 v[18:19], {v(X_+4,2)}, {v(X_+4,2)}, v[18:19]
    v_add_f32 v16, v16, v17
    v_pk_fma_f32 v[18:19], {v(X_+6,2)}, {v(X_+6,2)}, v[18:19]
    v_add_f32 v17, v18, v19
    ds_write_b64 v6, v[16:17] offset:{STL}
    buffer_store_dwordx4 {v(XR,4)}, v2, s[32:35], s68 offen sc1
    s_cmp_lg_u32 s6, 0
    s_waitcnt lgkmcnt(0)
    s_barrier
    s_cbranch_scc1 K2_X""")
    for w in range(9): k(f"ds_read_b64 {v(16+2*w,2)}, v4 offset:{STL+512*w}")
    for w in range(1, 9):
        if w % 2: k(f"s_waitcnt lgkmcnt({max(0, 7-w)})")
        k(f"v_pk_add_f32 v[16:17], v[16:17], {v(16+2*w,2)}")
    k(f"""v_mov_b32 v18, v16
    v_mov_b32 v19, v17
    v_permlane32_swap_b32 v16, v18
    v_permlane32_swap_b32 v17, v19
    v_pk_add_f32 v[16:17], v[16:17], v[18:19]
    s_mov_b32 exec_hi, 0
    buffer_store_dwordx2 v[16:17], v5, s[36:39], s70 offen sc1
    K2_X:
    s_endpgm""")

def K2():
    SD = int(os.environ.get("K2SD", 0)); PR = int(os.environ.get("K2PR", 3)); TH = [int(x) for x in os.environ.get("K2TH", "4,6,7").split(",")]
    AW = int(os.environ.get("K2AW", 1)); X2 = os.environ.get("K2X", "z")
    k = K("k2_kernel", 256, 768, 163840, 168)
    head(k, 256)
    S=[16,32]; O=48; P=64; QL=72; QH=76; KL=80; KH=78; V0=84; V1=88
    AKL=8; AKH=9; AV=[10,11]
    k(f"""s_and_b32 s3, s2, 7
    s_lshl_b32 s3, s3, 2
    s_bfe_u32 s4, s2, 0x20003
    s_add_u32 s3, s3, s4             ; head
    s_lshr_b32 s4, s2, 5
    s_lshl_b32 s4, s4, 3
    s_add_u32 s4, s4, s6             ; q tile
    s_mul_i32 s5, s3, {HIMG}
    s_mul_i32 s7, s4, {TIMG}
    s_add_u32 s7, s7, s5
    s_lshl_b32 s30, s6, 10
    s_add_u32 s31, s5, s30
    v_lshlrev_b32 v2, 4, v1
    v_and_b32 v3, 31, v1
    v_lshlrev_b32 v3, 2, v3
    s_cmp_ge_u32 s6, 8
    s_waitcnt lgkmcnt(0)""")
    k.srd(36, 28, 32*HIMG, 0)
    k(f"""s_cbranch_scc1 K2_HELP
    s_add_u32 s36, s28, {KVIMG}
    s_addc_u32 s37, s29, 0""")
    k.srd(32, 28, 32*HIMG, QIMG); k.srd(44, 28, 64*36*1024, OF)
    WO = 92
    def wold(i):
        for j in range(3): k(f"buffer_load_dwordx4 {v(WO+12*i+4*j,4)}, v2, s[52:55], s57 offen offset:{1024*j}")
        k("s_add_u32 s57, s57, 9216")
    k(f"""buffer_load_dwordx4 {v(QL,4)}, v2, s[32:35], s7 offen
    buffer_load_dword v{QH}, v3, s[32:35], s7 offen offset:2304
    buffer_load_dwordx4 {v(KL,4)}, v2, s[36:39], s5 offen
    buffer_load_dword v{KH}, v3, s[36:39], s5 offen offset:2304""")
    for j in range(3):
        k(f"s_add_u32 m0, s30, {8192*j}\ns_add_u32 s7, s31, {8192*j}\nbuffer_load_dwordx4 v2, s[36:39], s7 offen lds")
    tr_lane(k, 4, 5, 6); pi_c(k, 6, 7)
    k(f"""v_lshrrev_b32 v7, 1, v4
    v_lshl_add_u32 v5, v7, 2, v5     ; 4hf+r
    v_lshlrev_b32 v12, 5, v5
    v_lshl_add_u32 v12, v6, 3, v12   ; lo
    v_lshlrev_b32 v13, 3, v5
    v_add_u32 v13, 512, v13          ; hi
    v_and_b32 v4, 1, v4
    v_cmp_eq_u32 vcc, 1, v4
    v_add_u32 v14, 256, v12
    v_add_u32 v15, 64, v13
    v_cndmask_b32 v12, v12, v13, vcc
    v_cndmask_b32 v13, v14, v15, vcc
    {'''v_and_b32 v4, 3, v1
    v_cmp_ne_u32 s[48:49], 0, v4
    s_and_b64 vcc, vcc, s[48:49]
    v_mov_b32 v4, 0x100000
    v_cndmask_b32 v12, v12, v4, vcc
    v_cndmask_b32 v13, v13, v4, vcc''' if 'z' in X2 else ''}
    v_cmp_gt_u32 s[48:49], 32, v1""")
    tsetup(k)
    k(f"""v_mov_b32 v{KH+1}, 0x3f803f80
    s_mov_b32 s40, 0
    s_mov_b32 s41, 1
    s_lshr_b32 s43, s6, 2
    v_mov_b32 v{QH+1}, 0
    v_mov_b32 v14, 0xff800000
    s_waitcnt vmcnt(3) lgkmcnt(0)
    v_cndmask_b32 v{QH}, 0, v{QH}, s[48:49]
    s_branch K2_MAX1
    K2_RESTART:
    v_mov_b32 v{QH+1}, 0
    v_mov_b32 v14, 0xff800000
    v_mov_b32 v{AKL}, v2
    v_mov_b32 v{AKH}, v3
    K2_MAX:
    ds_read_b32 v{KH}, v{AKH} offset:2304
    ds_read_b128 {v(KL,4)}, v{AKL}
    v_add_u32 v{AKH}, {TIMG}, v{AKH}
    v_add_u32 v{AKL}, {TIMG}, v{AKL}
    s_waitcnt lgkmcnt(0)
    K2_MAX1:
    s_nop 1
    v_mfma_f32_32x32x8_bf16 {v(S[0],16)}, {v(KH,2)}, {v(QH,2)}, 0
    v_mfma_f32_32x32x16_bf16 {v(S[0],16)}, {v(KL,4)}, {v(QL,4)}, {v(S[0],16)}
    s_sub_u32 s41, s41, 1""")
    for j in range(8): k(f"v_max3_f32 v14, v{S[0]+2*j}, v{S[0]+2*j+1}, v14")
    k(f"""s_cmp_lg_u32 s41, 0
    s_cbranch_scc1 K2_MAX""")
    k.check_loop("K2_MAX")
    k(f"""v_mov_b32 v15, v14
    v_mov_b32 v{AKL}, v2
    v_mov_b32 v{AKH}, v3
    v_permlane32_swap_b32 v14, v15
    v_max_f32 v14, v14, v15
    v_cvt_pk_bf16_f32 v15, -v14, -v14
    v_mov_b32 v{AV[0]}, v12
    v_lshlrev_b32 v4, 16, v15
    v_add_f32 v4, v4, v14
    v_cvt_pk_bf16_f32 v4, -v14, -v4
    v_mov_b32 v{AV[1]}, v13
    v_cndmask_b32 v{QH+1}, 0, v4, s[48:49]""")
    for r in range(16): k(f"v_mov_b32 v{O+r}, 0")
    for r in range(4): k(f"v_mov_b32 v{P+4+r}, 0\nv_mov_b32 v{V1+r}, 0")
    k(f"""s_cmp_lg_u32 s40, 0
    s_cbranch_scc1 K2_NB
    s_waitcnt vmcnt(0)
    s_barrier
    K2_NB:
    ds_read_b32 v{KH}, v{AKH} offset:2304
    ds_read_b128 {v(KL,4)}, v{AKL}
    ds_read_b64_tr_b16 {v(V0,2)}, v{AV[0]} offset:1024
    ds_read_b64_tr_b16 {v(V0+2,2)}, v{AV[1]} offset:1024
    s_waitcnt lgkmcnt(2)
    v_mfma_f32_32x32x8_bf16 {v(S[0],16)}, {v(KH,2)}, {v(QH,2)}, 0
    v_mfma_f32_32x32x16_bf16 {v(S[0],16)}, {v(KL,4)}, {v(QL,4)}, {v(S[0],16)}
    ds_read_b32 v{KH}, v{AKH} offset:{2304+TIMG}
    ds_read_b128 {v(KL,4)}, v{AKL} offset:{TIMG}
    s_mov_b32 s42, 8
    s_nop 7
    s_waitcnt lgkmcnt(0)""")
    if PR == 2: k("s_cmp_eq_u32 s43, 0\ns_cbranch_scc1 K2_LOOP\ns_setprio 1")
    if PR == 3: k("s_setprio 3")
    k(f"""s_mov_b32 s43, 0xfe
    K2_LOOP:
    s_bitcmp1_b32 s43, s40
    s_cbranch_scc1 K2_SYNC
    K2_BACK:""")
    for t in range(8):
        c = S[t % 2]; n = S[(t+1) % 2]
        if SD:
            e = lambda i: k(f"v_exp_f32 v{P+i//2 if i%2 else c+i}, v{c+i}")
            cv = lambda i: k(f"v_mov_b32_sdwa v{P+i}, v{c+2*i} dst_sel:WORD_0 dst_unused:UNUSED_PRESERVE src0_sel:WORD_1")
        else:
            e = lambda i: k(f"v_exp_f32 v{c+i}, v{c+i}")
            cv = lambda i: k(f"v_cvt_pk_bf16_f32 v{P+i}, v{c+2*i}, v{c+2*i+1}")
        if PR == 1 and t % 4 == 0:
            k(f"""s_xor_b32 s43, s43, 1
            s_setprio 0
            s_cbranch_scc0 K2_P{t}
            s_setprio 1
            K2_P{t}:""")
        k(f"""s_waitcnt lgkmcnt(5)
        v_mfma_f32_32x32x8_bf16 {v(n,16)}, {v(KH,2)}, {v(QH,2)}, 0
        ds_read_b32 v{KH}, v{AKH} offset:{2304+TIMG*(t+2)}""")
        e(0); e(1); e(2); e(3)
        k(f"""s_waitcnt lgkmcnt(4)
        v_mfma_f32_32x32x16_bf16 {v(O,16)}, {v(V1,4)}, {v(P+4,4)}, {v(O,16)}
        ds_read_b64_tr_b16 {v(V1,2)}, v{AV[0]} offset:{1024+640+TIMG*t}
        ds_read_b64_tr_b16 {v(V1+2,2)}, v{AV[1]} offset:{1024+640+TIMG*t}""")
        cv(0); e(4); cv(1); e(5); e(6); e(7)
        k(f"""s_waitcnt lgkmcnt(5)
        v_mfma_f32_32x32x16_bf16 {v(n,16)}, {v(KL,4)}, {v(QL,4)}, {v(n,16)}
        ds_read_b128 {v(KL,4)}, v{AKL} offset:{TIMG*(t+2)}""")
        cv(2); e(8); cv(3); e(9); e(10); e(11)
        k(f"""s_waitcnt lgkmcnt(4)
        v_mfma_f32_32x32x16_bf16 {v(O,16)}, {v(V0,4)}, {v(P,4)}, {v(O,16)}
        ds_read_b64_tr_b16 {v(V0,2)}, v{AV[0]} offset:{1024+TIMG*(t+1)}
        ds_read_b64_tr_b16 {v(V0+2,2)}, v{AV[1]} offset:{1024+TIMG*(t+1)}""")
        cv(4); e(12); cv(5); e(13); e(14); e(15)
        if t == 7:
            for r in (AKL, AKH, AV[0], AV[1]): k(f"v_add_u32 v{r}, {8*TIMG}, v{r}")
            k("s_sub_u32 s42, s42, 1\ns_add_u32 s40, s40, 1\ns_cmp_lg_u32 s42, 0")
        cv(6); cv(7)
    i0 = k.L.index("K2_BACK:")
    def drop(x, j):
        if not isinstance(x, Ins): return False
        return ("r" in X2 and x.ds) or ("m" in X2 and x.mfma) or ("e" in X2 and x.trans) or ("h" in X2 and x.ds and (j // 46) % 2)
    k.L[i0:] = [x for j, x in enumerate(k.L[i0:]) if not drop(x, j)]
    k("s_cbranch_scc1 K2_LOOP")
    if not X2.strip("zwjp"): k.check_loop("K2_LOOP")
    k.stamp(1)
    k(f"""s_waitcnt lgkmcnt(0)
    v_mfma_f32_32x32x16_bf16 {v(O,16)}, {v(V1,4)}, {v(P+4,4)}, {v(O,16)}
    s_mul_i32 s4, s4, 36
    s_add_u32 s5, s4, s3
    s_lshl_b32 s5, s5, 10
    s_lshl_b32 s7, s3, 7
    s_add_u32 s31, s4, 32
    s_lshl_b32 s31, s31, 10
    s_add_u32 s7, s7, s31
    {f'v_mov_b32 v4, v{O+10}{chr(10)}v_permlane32_swap_b32 v{O+10}, v4' if 'z' in X2 else ''}
    v_cmp_gt_f32 vcc, {f2u(2.0**60)}, v{O+10}
    v_rcp_f32 v4, v{O+10}
    s_cmp_eq_u64 vcc, -1
    s_cbranch_scc1 K2_OUT
    s_cmp_ge_u32 s40, 100
    s_cbranch_scc1 K2_OUT
    s_mov_b32 s40, 100
    s_mov_b32 s41, 64
    s_lshr_b32 s4, s2, 5
    s_lshl_b32 s4, s4, 3
    s_add_u32 s4, s4, s6
    s_branch K2_RESTART
    K2_OUT:""")
    for r in range(10): k(f"v_mul_f32 v{O+r}, v4, v{O+r}")
    for r in range(5): k(f"v_cvt_pk_bf16_f32 v{P+r}, v{O+2*r}, v{O+2*r+1}")
    for r in range(5): k(f"v_min_u32 v{P+r}, -2, v{P+r}")
    k(f"""buffer_store_dwordx4 {v(P,4)}, v2, s[44:47], s5 offen sc1
    s_mov_b32 exec_hi, 0
    buffer_store_dword v{P+4}, v3, s[44:47], s7 offen sc1
    s_mov_b32 exec_hi, -1
    s_cmp_lg_u32 s6, s75
    s_cbranch_scc1 K2_NG
    ds_write_b16 v7, v7 offset:{FGO}
    K2_NG:""")
    if AW:
        k("s_cmp_ge_u32 s6, 4\ns_cbranch_scc1 K2_T")
        for i in range(6): wold(i)
    k23tail(k, WO)
    k("K2_SYNC:")
    for it in range(1, 8): k(f"s_cmp_eq_u32 s40, {it}\ns_cbranch_scc1 K2_S{it}")
    k("s_setprio 0\ns_branch K2_BACK")
    for it in range(2, 8):
        k(f"K2_S{it}:")
        if it in TH: k(f"s_setprio {2-TH.index(it)}")
        if it == 5: xld(k)
        if AW: k("s_cmp_lt_u32 s6, 4\ns_cbranch_scc1 K2_BACK")
        if "w" not in X2: wold(it-2)
        k("s_branch K2_BACK")
    ldspoll(k, "K2_S1", FKV, 0)
    k("s_branch K2_BACK")
    HP = os.environ.get("K2HP", "0322"); NB = int(os.environ.get("K2NB", 47))
    k(f"""K2_HELP:
    v_mov_b32 v7, 0
    s_cmp_lg_u32 s6, 10
    s_cbranch_scc1 K2_HJ
    s_setprio {HP[0]}
    s_add_u32 s36, s28, {KVIMG}
    s_addc_u32 s37, s29, 0
    s_add_u32 s5, s5, 24576""")
    for j in range(128):
        if j % 4 == 0: k(f"s_mov_b32 m0, {24576+1024*j}" + ("\ns_add_u32 s5, s5, 4096" if j else "\ns_nop 0"))
        k(f"buffer_load_dwordx4 v2, s[36:39], s5 offen offset:{1024*(j%4)} lds")
        if j == NB: k(f"s_barrier\ns_setprio {HP[1]}")
    k(f"""s_waitcnt vmcnt(0)
    ds_write_b16 v7, v7 offset:{FKV}
    s_endpgm
    K2_HJ:
    s_setprio {HP[2]}
    s_cmp_eq_u32 s6, 11
    s_cbranch_scc1 K2_H3""")
    k.srd(32, 16, 576*9216); k.srd(40, 18, 4608*1152); k.srd(44, 28, 144*512, UVF)
    k.srd(52, 28, 3456*2, MODB); k.srd(56, 28, W2F-W1F+WSZ, W1F)
    for n in range(36): assert (n*57)>>9 == n//9
    tr_lane(k, 4, 5, 6)
    k(f"""s_and_b32 s3, s2, 7              ; xcd
    s_lshr_b32 s4, s2, 3             ; j
    s_sub_u32 s31, s6, 8             ; h
    s_lshr_b32 s5, s3, 1
    s_mul_i32 s5, s5, 18
    s_add_u32 s5, s5, s4
    s_lshl_b32 s64, s5, 7
    s_mul_i32 s7, s31, {288*9216}
    s_add_u32 s64, s64, s7           ; W1 src
    s_lshl_b32 s61, s5, 10
    s_mul_i32 s65, s5, {2*36*1024}
    s_and_b32 s7, s3, 1
    s_mul_i32 s7, s7, {WSZ}
    s_add_u32 s65, s65, s7
    s_mul_i32 s7, s31, {18*1024}
    s_add_u32 s65, s65, s7           ; W1F dst
    s_mul_i32 s60, s31, 576
    s_lshl_b32 s62, s31, 12
    s_add_u32 s62, s62, {HIMG}
    v_lshrrev_b32 v19, 1, v6
    v_mul_u32_u24 v19, 1152, v19
    v_sub_u32 v19, {2304*2}, v19
    v_lshl_add_u32 v19, v5, 5, v19
    v_lshrrev_b32 v8, 1, v4
    v_lshl_add_u32 v19, v8, 4, v19
    v_xor_b32 v9, v4, v6
    v_and_b32 v9, 1, v9
    v_and_b32 v10, 2, v5
    v_or_b32 v9, v9, v10
    v_lshl_add_u32 v19, v9, 20, v19
    v_lshrrev_b32 v9, 3, v1
    v_and_b32 v10, 7, v1
    v_lshlrev_b32 v10, 4, v10
    v_mad_u32_u24 v11, v9, 36, 0
    v_lshl_add_u32 v12, v11, 8, v10  ; W1 voffset
    v_lshl_add_u32 v13, v11, 5, v10  ; W2 voffset
    v_and_b32 v9, 3, v9
    v_lshlrev_b32 v9, 5, v9
    v_xor_b32 v14, v9, v2
    v_add_u32 v14, s62, v14
    v_and_b32 v4, 1, v4
    v_lshlrev_b32 v9, 5, v5          ; swizzle
    v_lshl_add_u32 v10, v8, 3, v5
    v_lshlrev_b32 v10, 7, v10
    v_lshl_add_u32 v10, v4, 5, v10
    v_lshl_add_u32 v10, v6, 3, v10
    v_xor_b32 v10, v9, v10
    v_add_u32 v15, s62, v10
    v_xor_b32 v16, 64, v15
    v_lshl_add_u32 v10, v8, 4, v5
    v_lshl_add_u32 v10, v4, 2, v10
    v_lshlrev_b32 v10, 7, v10
    v_add_u32 v10, s62, v10
    v_lshl_add_u32 v17, v6, 4, v10
    v_xor_b32 v17, v9, v17
    v_xor_b32 v18, 64, v17
    v_lshl_add_u32 v20, v6, 3, v10
    v_xor_b32 v20, v9, v20
    v_xor_b32 v21, 32, v20
    v_xor_b32 v22, 64, v20
    v_xor_b32 v23, 64, v21
    s_barrier""")
    ldspoll(k, "K2_HW", FKV, 4)
    UA = 148
    def job(ng, srd, vo, sb, src, ra, troff, db, dst, uv=0):
        vm = VM(k); D = 6 if uv else 9; RS = 20 if uv else 16
        def ld(g):
            for i in range(4):
                k(f"s_add_u32 s30, s{sb}, {src(g, i)}")
                vm.issue(f"buffer_load_dwordx4 {v(24+RS*(g%D)+4*i,4)}, v{vo}, {sr(srd)}, s30 offen nt", g)
            if uv: vm.issue(f"buffer_load_dwordx4 {v(24+RS*(g%D)+16,4)}, v19, s[52:55], s60 offen offset:{64*g}", g)
        for g in range(min(D, ng)): ld(g)
        for g in range(ng):
            b = 24+RS*(g%D)
            vm.wait(g)
            for i in range(4): k(f"ds_write_b128 v14, {v(b+4*i,4)} offset:{1024*i}")
            k("s_waitcnt lgkmcnt(0)")
            for q in range(4):
                for h in range(2): k(f"ds_read_b64_tr_b16 {v(b+4*q+2*h,2)}, v{ra(g, q)} offset:{troff(g, q, h)}")
            for q in range(4):
                k(f"s_add_u32 s30, s{db(g)}, {dst(g, q)}\ns_waitcnt lgkmcnt({6-2*q})")
                vm.issue(f"buffer_store_dwordx4 {v(b+4*q,4)}, v2, s[56:59], s30 offen sc1")
                if uv: k(f"v_mfma_f32_16x16x32_bf16 {v(UA+4*q,4)}, {v(b+16,4)}, {v(b+4*q,4)}, {v(UA+4*q,4) if g else 0}")
            if g+D < ng: ld(g+D)
    if "j" in X2: k("s_endpgm")
    k("s_cmp_ge_u32 s4, 18\ns_cbranch_scc1 K2_H2")
    job(9, 32, 12, 64, lambda g, i: (g*32+8*i)*9216, lambda g, q: 15+q%2, lambda g, q, h: (16*(q//2)+4*h)*128,
        lambda g: 65, lambda g, q: ((q%2)*36 + 2*g+q//2)*1024, 1)
    k(f"v_lshlrev_b32 v19, 3, v1\nv_lshlrev_b32 v8, 7, v1\nv_add_u32 v9, {HIMG+4096}, v2")
    for r in range(8): k(f"v_permlane16_swap_b32 v{UA+8+r}, v{24+r}")
    for r in range(8): k(f"v_add_f32 v{UA+r}, v{UA+r}, v{24+r}")
    k(f"""s_cmp_eq_u32 s6, 8
    s_cbranch_scc1 K2_U0
    ds_write_b128 v9, {v(UA,4)}
    ds_write_b128 v9, {v(UA+4,4)} offset:1024
    s_waitcnt lgkmcnt(0)
    ds_write_b16 v7, v7 offset:{FUV}
    s_branch K2_U1""")
    ldspoll(k, "K2_U0", FUV, 4)
    k(f"""ds_read_b128 v[24:27], v9
    ds_read_b128 v[28:31], v9 offset:1024
    s_mov_b64 exec, 0xffff
    s_waitcnt lgkmcnt(0)""")
    for r in range(8):
        k(f"""v_add_f32 v20, v{UA+r}, v{24+r}
        v_cvt_pk_bf16_f32 v{33+2*r}, v20, 0
        v_lshlrev_b32 v21, 16, v{33+2*r}
        v_sub_f32 v21, v20, v21
        v_cvt_pk_bf16_f32 v{32+2*r}, v20, v21
        buffer_store_dwordx2 {v(32+2*r,2)}, v19, s[44:47], s61 offen offset:{128*r}""")
    k("K2_U1:\ns_mov_b32 exec_lo, -1\ns_mov_b32 exec_hi, 0xffff\ns_waitcnt vmcnt(0)")
    for t in range(6): k(f"s_add_u32 s30, s65, {t//3*36864+t%3*6144}\nbuffer_load_dword v23, v8, s[56:59], s30 offen")
    k(f"""s_endpgm
    K2_H2:
    s_mul_i32 s31, s31, 14
    s_add_u32 s4, s4, s31
    s_cmp_ge_u32 s4, 36
    s_cbranch_scc1 END_k2_kernel
    s_mul_i32 s5, s3, 18
    s_add_u32 s5, s5, s4
    s_sub_u32 s5, s5, 18
    s_mul_i32 s66, s5, {32*1152}     ; W2 src
    s_lshr_b32 s7, s3, 1             ; sp
    s_mul_i32 s30, s7, 36
    s_sub_u32 s5, s5, s30            ; r
    s_mul_i32 s30, s5, 57
    s_lshr_b32 s30, s30, 9           ; r/9
    s_mul_i32 s30, s30, 35
    s_lshl_b32 s5, s5, 2
    s_sub_u32 s5, s5, s30            ; pos
    s_mul_i32 s67, s5, 9216
    s_mul_i32 s30, s7, {4*36*9216}
    s_add_u32 s67, s67, s30
    s_add_u32 s67, s67, {W2F-W1F}    ; W2F dst
    s_and_b32 s7, s7, 1
    s_mul_i32 s7, s7, 5120
    s_add_u32 s68, s67, s7
    s_sub_u32 s69, s67, s7
    s_add_u32 s69, s69, 5120""")
    job(9, 40, 13, 66, lambda g, i: 8*i*1152 + 128*g, lambda g, q: 17+q//2 if g < 8 else 20+q,
        lambda g, q, h: 8*h*128 + (8*(q%2) if g < 8 else 0),
        lambda g: 68+g%2 if g < 8 else 67, lambda g, q: (g//2*36*9 + q if g < 8 else q*36*9 + 4)*1024)
    k(f"""s_endpgm
    K2_H3:
    s_setprio {HP[3]}
    s_barrier""")
    ldspoll(k, "K2_HX", FKV, 4)
    k.srd(32, 28, 256*36864, PART); k.srd(40, 28, 256*128, FLG)
    k("""s_mul_i32 s30, s2, 36864
    s_lshl_b32 s31, s2, 7
    v_mov_b32 v28, -1
    v_mov_b32 v29, -1
    v_mov_b32 v30, -1
    v_mov_b32 v31, -1
    v_mov_b32 v32, 0
    v_lshlrev_b32 v33, 20, v1
    buffer_store_dword v32, v33, s[40:43], s31 offen sc1""")
    for j in range(0 if "p" in X2 else 36):
        if j % 4 == 0 and j: k("s_add_u32 s30, s30, 4096")
        k(f"buffer_store_dwordx4 v[28:31], v2, s[32:35], s30 offen offset:{1024*(j%4)} sc1")
    code_prefetch(k, "km_kernel", "CODE_END", 24)
    k.srd(44, 28, 64*36*1024, OF)
    tsetup(k); xld(k)
    for i in range(6): wold(i)
    k.stamp(1)
    ldspoll(k, "K2_HG", FGO, 8)
    k("s_branch K2_T2")
    tail(k)
    return k

def later():
    ks = [K2()]
    try:
        from km import KM
        ks += [KM()]
    except ImportError: pass
    return ks
```

```python
from lib import *
from k01 import *

class LG(VM):
    def cnt(s, tag): return min(15, s.n - s.tag[tag])

def KM():
    SL = 24576; SL2 = 36864; UVL = 4*SL2
    LB = [n % 6 * SL for n in range(15)]
    GT = [(0,1),(2,),(3,4),(5,6),(7,8)]; RAMP = [int(c, 16) for c in os.environ.get("KMRAMP", "356")]
    H0 = int(os.environ.get("KMH0", 12)); PK = int(os.environ.get("KMPK", 0)); PRIO = int(os.environ.get("KMPRIO", 0))
    S2 = [2,3,0,1]; DI = int(os.environ.get("KMDI", 4)); YR = int(os.environ.get("KMYR", 1)); D17 = int(os.environ.get("KMD17", 15))
    ORD = [(0,0),(0,1),(0,2)] + [x for t in range(9) for x in [(1,t),(2,t),(3,t)] + ([(0,t+3)] if t < 6 else [])]
    if "o" in os.environ.get("KMX", ""): ORD = [(r,t) for t in range(9) for r in range(4)]
    SW = int(os.environ.get("KMSW", 0)); STP = int(os.environ.get("KMSTP", 16))
    YU = int(os.environ.get("KMYU", 16)); ROT = int(os.environ.get("KMROT", 0)); X = os.environ.get("KMX", "")
    S4 = int(os.environ.get("KMS4", 72))
    PUB = {9: 1, 12: 3, 15: 5, 17: 7, 18: 8}
    CHK = {13: 1, 16: 3, 18: 5, 20: 7, 21: 8}
    chk = dict(CHK); okv = [-1]
    if "n" in X: PUB = {}; CHK = {}
    if "p" in X: CHK = {}
    k = K("km_kernel", 256, 512, UVL+4096, 112, na=144)
    head(k, 256)
    TB=lambda j: 48+16*(j%4)
    WB=16; UV=12; ST=80; T=8
    A0=0; L16=1; HS=2; L8=3; BX=4; NRL=6; SIG=7
    k(f"""s_and_b32 s3, s2, 1
    s_lshl_b32 s3, s3, 3
    s_lshr_b32 s4, s2, 5
    s_add_u32 s3, s3, s4             ; rb
    s_bfe_u32 s4, s2, 0x20001        ; sp
    s_bfe_u32 s5, s2, 0x20003        ; cb
    s_and_b32 s26, s6, 3
    s_cmp_{'lt' if SW else 'ge'}_u32 s6, 4
    s_cbranch_scc1 KM_LD
    s_lshl_b32 s7, s3, 2
    s_add_u32 s7, s7, s26
    s_lshl_b32 s56, s3, 2
    s_add_u32 s56, s56, s5
    s_lshl_b32 s56, s56, 2
    s_add_u32 s56, s56, s26
    s_mul_i32 s30, s7, {36*1024}     ; y base""")
    for q in range(4):
        if ROT: k(f"s_add_u32 s31, s5, {q}\ns_and_b32 s31, s31, 3\ns_mul_i32 s31, s31, 9216\ns_add_u32 s{48+q}, s30, s31")
        else: k(f"s_add_u32 s{48+q}, s30, {9216*q}")
    k(f"""s_mul_i32 s53, s7, {4*256}
    v_lshlrev_b32 v{L8}, 3, v1
    v_lshrrev_b32 v11, 5, v1         ; hf
    v_and_b32 v10, 31, v1            ; tok
    v_cmp_gt_u32 vcc, 32, v1
    v_lshlrev_b32 v{L16}, 4, v1
    s_waitcnt lgkmcnt(0)""")
    k.srd(32, 28, 64*36*1024, YF)
    if PRIO: k(f"s_setprio {PRIO}")
    vm = VM(k); lg = LG(k)
    def yld(s):
        q, r = divmod(s, 9)
        if r in (4, 8): k(f"s_add_u32 s{48+q}, s{48+q}, 4096")
        vm.issue(f"buffer_load_dwordx4 {a(4*s,4)}, v{L16}, s[32:35], s{48+q} offen offset:{1024*(r%4)}", ("y", s))
    for s in range(min(YU, STP)): yld(s)
    k.srd(36, 28, 64*4*256, ST2); k.srd(40, 28, 128*147456, HF); k.srd(44, 28, 256*36864, PART)
    k.srd(60, 28, 3456*2, MODB); k.srd(64, 24, 2048*1152); k.srd(68, 28, 64*36*1024, X1F)
    k(f"""v_mul_u32_u24 v4, {2*256}, v11
    v_lshl_add_u32 v{ST+12}, v10, 3, v4
    s_mov_b32 s16, s53""")
    def stld():
        for j in range(2): vm.issue(f"buffer_load_dwordx2 {v(ST+2*j,2)}, v{ST+12}, s[36:39], s16 offen offset:{256*j}", "st")
    if YU >= STP: stld()
    yn = [YU]
    for s in range(STP, YU): yld(s)
    k(f"""v_lshrrev_b32 v4, 4, v10
    s_mov_b32 s31, 147456
    v_mul_lo_u32 v4, v4, s31
    v_and_b32 v5, 15, v10
    v_lshl_add_u32 v4, v11, 8, v4
    v_lshl_add_u32 v{HS}, v5, 4, v4
    v_mov_b32 v{A0}, v{L16}
    v_add_u32 v{L8}, {UVL}, v{L8}
    s_mul_i32 s52, s7, {2*147456}
    s_mul_i32 s31, s4, 36864
    s_add_u32 s52, s52, s31
    s_lshr_b32 s26, s4, 1            ; u0
    s_and_b32 s27, s4, 1             ; G0
    s_mul_i32 s31, s26, 147456
    s_add_u32 s54, s52, s31
    s_sub_u32 s55, s52, s31
    s_add_u32 s55, s55, 147456       ; u slot 1
    s_lshl_b32 s31, s5, 10
    s_add_u32 s52, s52, s31
    s_mul_i32 s56, s56, 36864        ; P0
    s_lshl_b32 s57, s5, 1
    s_add_u32 s57, s57, s27
    s_lshl_b32 s58, s57, 12
    s_add_u32 s58, s58, s30
    s_lshl_b32 s31, s26, 8
    s_add_u32 s58, s58, s31
    s_add_u32 s59, s30, s31
    s_lshl_b32 s31, s5, 10
    s_add_u32 s59, s59, s31
    s_add_u32 s59, s59, {32*1024}
    s_lshl_b32 s57, s57, 7
    s_lshl_b32 s53, s5, 5
    s_add_u32 s53, s53, 1024
    s_lshl_b32 s7, s7, 1
    s_add_u32 s7, s7, s26
    s_mul_i32 s7, s7, {16*1152}""")
    for r in range(4): k(f"s_add_u32 s31, s5, {r}\ns_and_b32 s31, s31, 3\ns_lshl_b32 s31, s31, 10\ns_add_u32 s{8+r}, s54, s31\ns_add_u32 s{12+r}, s55, s31")
    cur = [0]
    stat = [("vw", "st")] + f"""v_pk_add_f32 {v(ST,2)}, {v(ST,2)}, {v(ST+2,2)}
    v_mov_b32 v{ST+2}, v{ST}
    v_mov_b32 v{ST+3}, v{ST+1}
    v_permlane32_swap_b32 v{ST}, v{ST+2}
    v_permlane32_swap_b32 v{ST+1}, v{ST+3}
    v_pk_add_f32 {v(ST,2)}, {v(ST,2)}, {v(ST+2,2)}
    v_mul_f32 v{ST}, {f2u(-1/576.)}, v{ST}
    v_mul_f32 v{ST+1}, {f2u(1/576.)}, v{ST+1}
    v_fma_f32 v{ST+1}, -v{ST}, v{ST}, v{ST+1}
    v_max_f32 v{ST+1}, 0, v{ST+1}
    v_add_f32 v{ST+1}, {f2u(1e-5)}, v{ST+1}
    v_sqrt_f32 v{SIG}, v{ST+1}
    v_rsq_f32 v{NRL}, v{ST+1}
    v_cndmask_b32 v{ST}, v{SIG}, v{ST}, vcc
    v_mul_f32 v{NRL}, {f2u(-LOG2E)}, v{NRL}
    v_cvt_pk_bf16_f32 v{BX}, v{ST}, v{ST}
    v_lshlrev_b32 v{ST+1}, 16, v{BX}
    v_sub_f32 v{ST+1}, v{ST}, v{ST+1}
    v_cvt_pk_bf16_f32 v{BX+1}, v{ST+1}, 0""".split("\n")
    steps = [(g, s) for g in range(5) for s in range(36)]
    def nrd(i): return len(GT[steps[i][0]])
    def rd(i):
        g, s = steps[i]; n = 3*g + s//12; b = WB + 8*(i % 4); L = []
        if s % 12 == 0:
            L.append(("bar", n))
            nb = LB[n] // (2*SL) * 2*SL if not 0 <= LB[n]-cur[0] <= 65536-SL else cur[0]
            if nb != cur[0]: L.append(f"v_add_u32 v{A0}, {nb}, v{L16}"); cur[0] = nb
        if s == 29:
            for t in range(nrd(i)): L.append(("ds", f"ds_read_b64 {v(UV+2*t,2)}, v{L8} offset:{512*(GT[g][t]%8)}", None))
        for t in range(nrd(i)): L.append(("ds", f"ds_read_b128 {v(b+4*t,4)}, v{A0} offset:{LB[n]-cur[0]+1024*(s%12)+12288*t}", ("w", i)))
        return L
    def silu_ops(tl):
        acc = TB(tl); ops = []
        for q in range(2):
            pk = acc + 8*q
            for hh in range(2):
                r0 = acc + 8*q + 4*hh; t0 = T
                if PK:
                    for j in (0, 2): ops.append(f"v_pk_mul_f32 {v(t0+j,2)}, {v(r0+j,2)}, {v(NRL,2)} op_sel_hi:[1,0]")
                else:
                    for j in range(4): ops.append(f"v_mul_f32 v{t0+j}, v{NRL}, v{r0+j}")
                for j in range(4): ops.append(f"v_exp_f32 v{t0+j}, v{t0+j}")
                if PK:
                    for j in (0, 2): ops.append(f"v_pk_fma_f32 {v(t0+j,2)}, {v(t0+j,2)}, {v(NRL,2)}, {v(NRL,2)} op_sel:[0,1,1]")
                else:
                    for j in range(4): ops.append(f"v_fma_f32 v{t0+j}, v{t0+j}, v{SIG}, v{SIG}")
                for j in range(4): ops.append(f"v_rcp_f32 v{t0+j}, v{t0+j}")
                if PK:
                    for j in (0, 2): ops.append(f"v_pk_mul_f32 {v(t0+j,2)}, {v(r0+j,2)}, {v(t0+j,2)}")
                else:
                    for j in range(4): ops.append(f"v_mul_f32 v{t0+j}, v{r0+j}, v{t0+j}")
                for j in range(2): ops.append(f"v_cvt_pk_bf16_f32 v{pk+2*hh+j}, v{t0+2*j}, v{t0+2*j+1}")
            ops.append(("vm", f"buffer_store_dwordx4 {v(pk,4)}, v{HS}, s[40:43], s52 offen offset:{512*q} sc1", ("hs", tl)))
            if q: ops.append("s_add_u32 s52, s52, 4096")
        return ops
    def cost(op): return 8 if isinstance(op, str) and op.startswith(("v_exp", "v_rcp")) else 4
    STB = {int(x): j+1 for j, x in enumerate(os.environ.get("KMST", "0,3,15").split(","))}
    def emit(op):
        if isinstance(op, tuple):
            if op[0] == "bar":
                if op[1] in PUB: vm.wait(("hs", PUB[op[1]]))
                if op[1] in chk: okv[0] = chk[op[1]]
                k("s_barrier")
                if op[1] in STB: k.stamp(STB[op[1]])
            elif op[0] == "vm": vm.issue(op[1], op[2])
            elif op[0] == "ds": lg.issue(op[1], op[2])
            elif op[0] == "vw": vm.wait(op[1])
        else: k(op)
    HB = 0; NH = 9; W2 = 72; NW = 8; AD = 12
    AC2 = [16+4*j for j in range(8)] + [64+4*j for j in range(10)]
    A2 = {}
    for j, ut in enumerate([(0,0),(0,1),(0,2),(0,3),(0,5),(0,6),(0,7),(0,8),(1,0),(1,1),(1,2),(1,3),(1,5),(1,6),(1,7),(1,8),(0,4),(1,4)]): A2[ut] = AC2[j]
    def hld(s, t):
        r, tl = ORD[s]
        if r: assert tl <= okv[0] or 'n' in X, (s, tl)
        elif t == 0: vm.wait(("hs", tl))
        k(f"s_add_u32 s17, s{8+4*t+r}, {4096*tl}")
        vm.issue(f"buffer_load_dwordx4 {a(HB+8*(s%NH)+4*t,4)}, v{L16}, s[40:43], s17 offen sc1", ("h", s))
    TM = int(os.environ.get("KMTM", 28))
    units = [(s, t, (0, 1)) for s in range(TM) for t in range(9)]
    for ts, us in [((5,6),(0,1)), ((7,8,4),(0,1)), ((0,1,2,3),(1,)), ((0,1,2,3),(0,))]:
        units += [(s, t, us) for s in range(TM, 36) for t in ts]
    seen = set()
    def rd2(i):
        s, t, _ = units[i]; n = s // 4; L = []
        if n not in seen: L.append(("bar", 15+n)); seen.add(n)
        L.append(("ds", f"ds_read_b128 {a(W2+4*(i%NW),4)}, v{AD+S2[n%4]} offset:{9216*(s%4)+1024*t}", ("w2", i)))
        return L
    LA = 3; LA2 = 7; WG = 3
    for i in range(LA):
        for op in rd(i): emit(op)
    ops = []
    for i, (g, s) in enumerate(steps):
        nt = len(GT[g]); b = WB + 8*(i % 4)
        if s == 0:
            assert not ops
            ops = sum((silu_ops(x-2) for x in GT[g]), []) if g else list(stat); tot = sum(cost(o) for o in ops); done = 0
            s0, s1 = (1, 35) if g else (STP+1, 28)
        R = rd(i+LA) if i+LA < len(steps) else []
        if g == 4 and s >= 33:
            if s == 33: R += [f"v_add_u32 v{AD+j}, {SL2*j}, v{L16}" for j in range(4)]
            for j in {33: (0, 1), 34: (2, 3, 4), 35: (5, 6)}[s]: R += rd2(j)
        if g == 0: vm.wait(("y", s), f" lgkmcnt({lg.cnt(('w', i))})")
        else: k(f"s_waitcnt lgkmcnt({lg.cnt(('w', i))})")
        for t in range(nt):
            A = v(TB(GT[g][t]),16)
            k(f"v_mfma_f32_32x32x16_bf16 {A}, {v(b+4*t,4)}, {a(4*s,4)}, {A if s else '0'}")
            nr = len(R) - 1 if (t == 0 and nt == 2 and len(R) > 1) else len(R)
            for _ in range(nr): emit(R.pop(0))
            if g == 0:
                for _ in range((YR+t)//2):
                    if yn[0] < 36: yld(yn[0]); yn[0] += 1
                    if yn[0] == STP and YU < STP: stld()
            if g == 4 and H0 <= s < H0+16 and t == 1: hld((s-H0)//2, (s-H0) % 2)
            if ops and s >= s0:
                tgt = tot * ((s-s0)*nt+t+1) / ((s1-s0+1)*nt)
                while ops and done + cost(ops[0])/2 <= tgt: done += cost(ops[0]); emit(ops.pop(0))
                if s == s1 and t == nt-1:
                    while ops: emit(ops.pop(0))
        if s == 30:
            for t in range(nt): k(f"v_mfma_f32_32x32x8_bf16 {v(TB(GT[g][t]),16)}, {v(UV+2*t,2)}, {v(BX,2)}, {v(TB(GT[g][t]),16)}")
    assert not ops
    ops = silu_ops(7) + silu_ops(8); tot = sum(cost(o) for o in ops); done = 0
    XR = 48; GR = 56; XM = 104; GM = 106; VX = 108
    pre = f"""v_bfe_u32 v8, v{L16}, 8, 2
    v_and_b32 v9, 0xf0, v{L16}
    v_lshl_add_u32 v{VX}, v8, 9, v9
    v_lshlrev_b32 v{VX+1}, 4, v8
    v_and_b32 v10, 2, v8
    v_lshl_add_u32 v10, v10, 8, v9
    v_and_b32 v11, 1, v8
    v_lshl_add_u32 v10, v11, 3, v10
    v_lshlrev_b32 v11, 3, v8
    v_mul_u32_u24 v9, 72, v9
    v_add_u32 v{VX+2}, v9, v{VX+1}
    v_add_u32 v{VX+3}, v9, v11
    s_add_u32 s30, s57, {2880*2}
    s_add_u32 s31, s53, {2880*2}""".split("\n") + [
      ("vm", f"buffer_load_dwordx4 {v(XR,4)}, v{VX}, s[68:71], s58 offen", None),
      ("vm", f"buffer_load_dwordx4 {v(XR+4,4)}, v{VX}, s[68:71], s58 offen offset:2048", None),
      ("vm", f"buffer_load_dwordx2 {v(XM,2)}, v10, s[68:71], s59 offen", None),
      ("vm", f"buffer_load_dwordx4 {v(GR,4)}, v{VX+1}, s[60:63], s30 offen", None),
      ("vm", f"buffer_load_dwordx4 {v(GR+4,4)}, v{VX+1}, s[60:63], s30 offen offset:64", None),
      ("vm", f"buffer_load_dwordx2 {v(GM,2)}, v11, s[60:63], s31 offen", "pre")] + f"""s_mul_i32 s30, s4, 9216
    s_add_u32 s30, s30, s56
    s_mul_i32 s31, s26, 4608
    s_add_u32 s56, s56, s31          ; P0 + u0*4608
    s_add_u32 s48, s30, s31          ; own block, u0
    s_sub_u32 s49, s30, s31
    s_add_u32 s49, s49, 4608         ; own block, u1
    s_lshl_b32 s27, s27, 11
    s_add_u32 s50, s49, s27          ; u1 Gslot0
    s_sub_u32 s51, s49, s27
    s_add_u32 s51, s51, 2048         ; u1 Gslot1
    s_sub_u32 s52, s48, s27
    s_add_u32 s52, s52, 2048         ; u0 Gslot1
    s_add_u32 s48, s48, 4096
    s_add_u32 s49, s49, 4096
    s_xor_b32 s30, s4, 1
    s_mul_i32 s30, s30, 9216
    s_add_u32 s32, s56, s30
    s_xor_b32 s30, s4, 2
    s_mul_i32 s30, s30, 9216
    s_add_u32 s33, s56, s30
    s_xor_b32 s30, s4, 3
    s_mul_i32 s30, s30, 9216
    s_add_u32 s34, s56, s30
    s_add_u32 s36, s32, 4096
    s_add_u32 s37, s33, 4096
    s_add_u32 s38, s34, 4096
    s_add_u32 s32, s32, s27
    s_add_u32 s33, s33, s27
    s_add_u32 s34, s34, s27
    s_add_u32 s57, s57, s7
    s_add_u32 s53, s53, s7
    s_mov_b32 s31, 0xffff0000
    s_mov_b32 s35, 0x100000
    v_lshrrev_b32 v{L8}, 1, v{L16}""".split("\n")
    NU = len(units); HT = [int(c) for c in os.environ.get("KMHT", "36")]
    M0 = A2[(0,4)]; M1 = A2[(1,4)]
    def pack(r, n, d=None):
        d = r if d is None else d
        return [f"v_cvt_pk_bf16_f32 v{d+j}, v{r+2*j}, v{r+2*j+1}" for j in range(n//2)] + [f"v_min_u32 v{d+j}, -2, v{d+j}" for j in range(n//2)]
    def send(u, t, so, off): return pack(A2[(u,t)], 8) + [("vm", f"buffer_store_dwordx4 {v(A2[(u,t)],4)}, v{L16}, s[44:47], s{so} offen offset:{off} sc1", None)]
    own = [(16+2*j, XR+j, GR+j, 32+2*j) for j in range(8)] + [(M0+2*j, XM+j, GM+j, 100+2*j) for j in range(2)]
    fin = {(6,1): send(0,5,52,0) + send(1,5,51,0),
           (4,1): send(0,7,52,1024) + send(1,7,51,1024) + [f"v_accvgpr_read_b32 v{M0+j}, a{104+j}" for j in range(8)] + pack(M0, 4, 8)
                  + [("vm", f"buffer_store_dwordx2 v[8:9], v{L8}, s[44:47], s48 offen sc1", None)] + pack(M1, 4)
                  + [("vm", f"buffer_store_dwordx2 {v(M1,2)}, v{L8}, s[44:47], s49 offen sc1", None)],
           (3,1): send(1,0,50,0) + send(1,2,50,1024) + [("vw", "pre")]
                  + [x for (o, xx, gq, gf) in own for x in (f"v_lshlrev_b32 v{gf}, 16, v{gq}", f"v_and_b32 v{gf+1}, s31, v{gq}")]}
    hw = -1; tl = []; dly = 0
    for i, (s, t, us) in enumerate(units):
        if i % WG == 0:
            c = lg.cnt(("w2", min(i+WG, NU)-1)); ms = max(x[0] for x in units[i:i+WG])
            if ms > hw: vm.wait(("h", ms), f" lgkmcnt({c})"); hw = ms
            else: k(f"s_waitcnt lgkmcnt({c})")
        for u in us:
            A = v(A2[(u, t)],4) if t != 4 else a(104+4*u,4)
            k(f"v_mfma_f32_16x16x32_bf16 {A}, {a(W2+4*(i%NW),4)}, {a(HB+8*(s%NH)+4*u,4)}, {'0' if s==0 else A}")
            if i+LA2 < NU and u == us[0]:
                for op in rd2(i+LA2): emit(op)
            if u == 1 and t in HT and s+8 < 36: hld(s+8, HT.index(t))
            if u == 1 and ops and i >= 1:
                while ops and done + cost(ops[0])/2 <= tot * i / S4: done += cost(ops[0]); emit(ops.pop(0))
            if u == 1 and s >= 20 and pre and t not in HT: emit(pre.pop(0))
            dly -= 1
            if dly <= 0:
                for _ in range(2):
                    if tl: emit(tl.pop(0))
            if s == 35 and (t, u) in fin:
                assert not pre
                if not tl: dly = 2
                tl += fin[(t, u)]
    while tl: emit(tl.pop(0))
    assert not ops and not pre
    if len(STB) < 4: k.stamp(4)
    for (o, x, gq, gf) in own[::-1]:
        k(f"""v_lshlrev_b32 v10, 16, v{x}
        v_and_b32 v11, s31, v{x}
        v_pk_fma_f32 {v(o,2)}, {v(o,2)}, {v(gf,2)}, v[10:11]""")
    PD = 64
    if "d" not in X: k("s_waitcnt vmcnt(0)")
    k("KM_RETRY:")
    for d in range(3):
        for p in range(2): k(f"buffer_load_dwordx4 {v(PD+8*d+4*p,4)}, v{L16}, s[44:47], s{32+d} offen offset:{1024*p} sc1")
        k(f"buffer_load_dwordx2 {v(PD+24+2*d,2)}, v{L8}, s[44:47], s{36+d} offen sc1")
    k(f"s_waitcnt vmcnt(6)\nv_max3_u32 v8, v{PD}, v{PD+1}, v{PD+2}\nv_max3_u32 v9, v{PD+3}, v{PD+4}, v{PD+5}")
    k(f"v_max3_u32 v8, v8, v{PD+6}, v{PD+7}\nv_max3_u32 v9, v9, v{PD+24}, v{PD+25}")
    for d in (1, 2):
        k(f"s_waitcnt vmcnt({6-3*d})")
        for j in range(4): k(f"v_max3_u32 v{8+j%2}, v{8+j%2}, v{PD+8*d+2*j}, v{PD+8*d+2*j+1}")
        k(f"v_max3_u32 v8, v8, v{PD+24+2*d}, v{PD+25+2*d}")
    k(f"""v_max_u32 v8, v8, v9
    v_cmp_eq_u32 vcc, -1, v8
    s_nop 1
    s_cbranch_vccz KM_FIN
    s_sub_u32 s35, s35, 1
    s_cbranch_scc1 KM_FIN
    s_sleep 3
    s_branch KM_RETRY
    KM_FIN:""")
    for j, (o, x, gq, gf) in enumerate(own):
        P = [PD+8*d+j if j < 8 else PD+24+2*d+j-8 for d in range(3)]
        t0 = 48 + 6*(j % 2)
        for d in range(3): k(f"v_lshlrev_b32 v{t0+2*d}, 16, v{P[d]}\nv_and_b32 v{t0+2*d+1}, s31, v{P[d]}")
        k(f"""v_pk_add_f32 {v(t0,2)}, {v(t0,2)}, {v(t0+2,2)}
        v_pk_add_f32 {v(t0,2)}, {v(t0,2)}, {v(t0+4,2)}
        v_pk_fma_f32 {v(o,2)}, {v(t0,2)}, {v(gf,2)}, {v(o,2)}
        v_cvt_pk_bf16_f32 v{P[0]}, v{o}, v{o+1}""")
        if j in (3, 7): k(f"buffer_store_dwordx4 {v(PD+j-3,4)}, v{VX+2}, s[64:67], s57 offen offset:{16*(j-3)}")
    k(f"""s_cmp_eq_u32 s27, 0
    s_cselect_b32 exec_lo, -1, 0
    s_cselect_b32 exec_hi, 0, -1
    buffer_store_dwordx2 {v(PD+24,2)}, v{VX+3}, s[64:67], s53 offen
    s_endpgm""")
    k(f"""KM_LD:
    s_mov_b32 s7, s26
    s_lshl_b32 s3, s4, 2
    s_add_u32 s3, s3, s5             ; fb
    s_and_b32 s30, s2, 1
    s_mul_i32 s30, s30, {WSZ}
    s_mul_i32 s52, s3, {9*36*1024}
    s_add_u32 s56, s52, s30
    s_mul_i32 s58, s7, 3072          ; lds wave base
    s_mul_i32 s30, s5, {3 if ROT else 0}
    s_add_u32 s30, s30, s7""")
    for st in range(3):
        k(f"""s_add_u32 s31, s30, {4*st}
        s_sub_u32 s{60+st}, s31, 12
        s_cselect_b32 s31, s31, s{60+st}
        s_mul_i32 s31, s31, 3072
        s_add_u32 s{60+st}, s31, s56""")
    k(f"""v_lshlrev_b32 v8, 4, v1
    s_waitcnt lgkmcnt(0)""")
    k.srd(36, 28, 2*WSZ, W1F)
    vm = VM(k)
    def dma(n):
        if n >= 15:
            m = n - 15
            C = sum((ORD[4*m+w][1]*4 + ORD[4*m+w][0]) << (8*w) for w in range(4))
            k(f"""s_lshr_b32 s30, {C}, s59
            s_add_u32 s31, s30, s27
            s_and_b32 s31, s31, 3
            s_and_b32 s30, s30, 0xfc
            s_add_u32 s30, s30, s31
            s_mul_i32 s30, s30, 9216
            s_add_u32 s30, s30, s52""")
            for j in range(9):
                if j % 3 == 0: k(f"s_add_u32 m0, s53, {S2[m%4]*SL2+1024*j}\ns_add_u32 s31, s30, {1024*j}")
                PC = int(os.environ.get("KMPC", 99))
                if j >= 1 and PC < 63: k(f"s_waitcnt vmcnt({PC})")
                vm.issue(f"buffer_load_dwordx4 v8, s[44:47], s31 offen offset:{1024*(j%3)} lds", ("w", n))
            return
        g, st = divmod(n, 3)
        for t in range(len(GT[g])):
            k(f"s_add_u32 m0, s58, {LB[n]+12288*t}\ns_add_u32 s31, s{60+st}, {GT[g][t]*36*1024}")
            for j in range(3): vm.issue(f"buffer_load_dwordx4 v8, s[36:39], s31 offen offset:{1024*j} lds", ("w", n))
    PRE = int(os.environ.get("KMPRE", 2))
    dma(0); dma(1)
    k.srd(44, 28, WSZ, W2F); k.srd(40, 28, 144*512, UVF); k.srd(48, 28, 256*128, FLG)
    k(f"""s_mul_i32 s30, s3, {9*512}
    s_lshl_b32 s31, s7, 8
    s_add_u32 s64, s30, s31
    s_add_u32 s64, s64, 4096
    s_add_u32 s65, s31, {UVL}
    s_lshl_b32 s31, s7, 10
    s_add_u32 s30, s30, s31
    s_add_u32 m0, s31, {UVL}
    v_lshlrev_b32 v9, 2, v1
    v_lshlrev_b32 v10, 7, v1""")
    vm.issue("buffer_load_dwordx4 v8, s[40:43], s30 offen lds")
    for n in range(2, PRE): dma(n)
    k(f"""s_mul_i32 s4, s4, {1152*1152}
    s_mov_b32 s27, s5
    s_lshl_b32 s59, s7, 3
    s_lshr_b32 s5, s2, 3
    s_lshl_b32 s5, s5, 2
    s_add_u32 s5, s5, s7
    s_mul_i32 s5, s5, {81*128}
    s_add_u32 s4, s4, s5
    s_mul_i32 s53, s7, 9216
    s_lshl_b32 s54, s2, 7
    s_andn2_b32 s55, s54, {3<<10}
    v_and_b32 v13, 3, v1
    v_lshlrev_b32 v13, 10, v13
    v_lshlrev_b32 v14, 20, v0
    v_and_b32 v14, 0xff00000, v14
    s_mov_b32 s57, 0x100000""")
    nxt = PRE
    for n in range(24):
        if n in CHK:
            vm.wait(("f", n))
            k(f"""KM_P{n}:
            v_cmp_gt_u32 vcc, {CHK[n]+1}, v{16+n%2}
            s_nop 1
            s_cbranch_vccz KM_Q{n}
            s_sub_u32 s57, s57, 1
            s_cmp_lt_i32 s57, 0
            s_cbranch_scc1 KM_Q{n}
            s_sleep 2
            buffer_load_dword v{16+n%2}, v13, s[48:51], s55 offen sc1
            s_waitcnt vmcnt(0)
            s_branch KM_P{n}
            KM_Q{n}:""")
        vm.wait(("w", n)); k("s_barrier")
        if n+2 in CHK: vm.issue(f"buffer_load_dword v{16+n%2}, v13, s[48:51], s55 offen sc1", ("f", n+2))
        if n in PUB:
            k(f"v_mov_b32 v15, {PUB[n]+1}")
            vm.issue("buffer_store_dword v15, v14, s[48:51], s54 offen sc1")
        if "l" in X and n == int(os.environ.get("KML", 11)):
            k("s_waitcnt vmcnt(0)"); k.stamp(1)
            k("buffer_store_dword v15, v14, s[48:51], s54 offen offset:64 sc1\ns_waitcnt vmcnt(0)"); k.stamp(2)
            k("buffer_load_dword v12, v13, s[48:51], s55 offen sc1\ns_waitcnt vmcnt(0)"); k.stamp(3)
            k("buffer_load_dword v12, v13, s[48:51], s55 offen sc1\ns_waitcnt vmcnt(0)"); k.stamp(4)
        if n == 4: k("s_mov_b32 m0, s65"); vm.issue("buffer_load_dword v9, s[40:43], s64 offen lds")
        while nxt <= min(n+DI, 14, RAMP[n] if n < len(RAMP) else 99): dma(nxt); nxt += 1
        if n in (12, 13): dma(n+3)
        if n == D17: dma(17)
        if 16 <= n <= 21: dma(n+2)
        if n == int(os.environ.get("KMT", 99)): touch(k, vm, 44, 4, 10, 2, 11)
    tail(k)
    return k
```
